```python
import torch

def _softmax(x, axis=-1):
    return torch.softmax(x, dim=axis)
def _gelu(x):
    return torch.nn.functional.gelu(x, approximate="tanh")
def _silu(x):
    return torch.nn.functional.silu(x)
def _sigmoid(x):
    return torch.sigmoid(x)
def _layernorm(x, axis=-1, eps=1e-5):
    m = x.mean(dim=axis, keepdim=True)
    v = x.var(dim=axis, keepdim=True, unbiased=False)
    return (x - m) / torch.sqrt(v + eps)
def _scatter_add(tgt, idx, src, axis=0):
    return tgt.clone().index_add_(axis, idx, src)
def _segment_sum(src, seg, n):
    out = torch.zeros((n,) + src.shape[1:], dtype=src.dtype)
    return out.index_add_(0, seg, src)
def _pad(x, pw):
    flat = tuple(v for pair in reversed(pw) for v in pair)
    return torch.nn.functional.pad(x, flat)

kernel_name = 'sequential_preLN__linear_kernel_hedgehog__dense_activation_gelu__prompt'

def setup_inputs():

    _w = (lambda a: (lambda t: t.to(torch.bfloat16) if t.is_floating_point() else t)(torch.as_tensor(a)))
    def _A_setup():
        B, S, D, H = 1, 2048, 512, 32
        Dh = D // H
        return {
            "x": _w((lambda *s: torch.randn(*s, dtype=torch.bfloat16) * 0.05)(B, S, D)),
            "wqkv": _w((lambda *s: torch.randn(*s, dtype=torch.bfloat16) * 0.2)(D, 3 * D)),
            "w_phi": _w((lambda *s: torch.randn(*s, dtype=torch.bfloat16) * 0.2)(H, Dh, Dh) * (Dh ** -0.5)),
            "wo": _w((lambda *s: torch.randn(*s, dtype=torch.bfloat16) * 0.05)(D, D)),
        }
    _A_in = _A_setup()

    def _B_setup():
        B, S, D, F = 1, 2048, 512, 1792
        return {
            "x": _w((lambda *s: torch.randn(*s, dtype=torch.bfloat16) * 0.05)(B, S, D)),
            "w1": _w((lambda *s: torch.randn(*s, dtype=torch.bfloat16) * 3.2)(D, F) * (D ** -0.5)),
            "b1": _w((lambda *s: torch.randn(*s, dtype=torch.bfloat16) * 0.1)(F) * 0.01),
            "w2": _w((lambda *s: torch.randn(*s, dtype=torch.bfloat16) * 0.1)(F, D) * (F ** -0.5)),
            "b2": _w((lambda *s: torch.randn(*s, dtype=torch.bfloat16) * 0.1)(D) * 0.01),
        }
    _B_in = _B_setup()

    return {
        "A_x": _A_in["x"],
        "A_wqkv": _A_in["wqkv"],
        "A_w_phi": _A_in["w_phi"],
        "A_wo": _A_in["wo"],
        "B_x": _B_in["x"],
        "B_w1": _B_in["w1"],
        "B_b1": _B_in["b1"],
        "B_w2": _B_in["w2"],
        "B_b2": _B_in["b2"],
    }

def reference(A_x, A_wqkv, A_w_phi, A_wo, B_x, B_w1, B_b1, B_w2, B_b2):
    def _A_ref(x, wqkv, w_phi, wo):
        B, S, D = x.shape
        H = 32; Dh = D // H
        qkv = (lambda x, *d: x.permute(*d))((x @ wqkv).reshape(B, S, 3, H, Dh), 2, 0, 3, 1, 4)
        q, k, v = qkv[0], qkv[1], qkv[2]
        pq = torch.einsum("bhsd,hdf->bhsf", q, w_phi)
        pk = torch.einsum("bhsd,hdf->bhsf", k, w_phi)
        phi_q = torch.concatenate([_softmax(pq, axis=-1), _softmax(-pq, axis=-1)], axis=-1)
        phi_k = torch.concatenate([_softmax(pk, axis=-1), _softmax(-pk, axis=-1)], axis=-1)
        kv = torch.einsum("bhsf,bhsd->bhfd", phi_k, v)
        z  = torch.einsum("bhsf->bhf", phi_k)
        num = torch.einsum("bhqf,bhfd->bhqd", phi_q, kv)
        den = torch.einsum("bhqf,bhf->bhq", phi_q, z)[..., None] + 1e-6
        o = num / den
        return (lambda x, *d: x.permute(*d))(o, 0, 2, 1, 3).reshape(B, S, D) @ wo

    def _B_ref(x, w1, b1, w2, b2):
        h = torch.einsum("bsd,df->bsf", x, w1) + b1
        h = _gelu(h)
        return torch.einsum("bsf,fd->bsd", h, w2) + b2

    x = A_x
    h = x + _A_ref(_layernorm(x, axis=-1), A_wqkv, A_w_phi, A_wo)
    h2 = h + _B_ref(_layernorm(h, axis=-1), B_w1, B_b1, B_w2, B_b2)
    return h2
```

```python
import re

TRANS = ('v_exp_f32', 'v_log_f32', 'v_rcp_f32', 'v_rsq_f32', 'v_sqrt_f32', 'v_sin_f32', 'v_cos_f32')


def R(kind, base, n=1):
    return f"{kind}{base}" if n == 1 else f"{kind}[{base}:{base + n - 1}]"


class Reg:
    def __init__(self, kind, base, n):
        self.kind, self.base, self.n = kind, base, n

    def __str__(self):
        return R(self.kind, self.base, self.n)

    __repr__ = __str__

    def __format__(self, spec):
        return str(self)

    def __getitem__(self, i):
        if isinstance(i, slice):
            a = i.start or 0
            b = self.n if i.stop is None else i.stop
            assert 0 <= a < b <= self.n, (self, i)
            return Reg(self.kind, self.base + a, b - a)
        assert 0 <= i < self.n, (self, i)
        return Reg(self.kind, self.base + i, 1)

    def sub(self, a, n):
        return self[a:a + n]


class Alloc:
    def __init__(self, kind, lo, hi):
        self.kind, self.lo, self.hi = kind, lo, hi
        self.used = {}
        self.high = lo

    def __call__(self, n=1, align=None, name=''):
        align = align or (1 if n == 1 else (2 if n == 2 else 4))
        if n <= 2 and self.kind == 'v':
            b = (self.hi - n) // align * align
            while b >= self.lo:
                if all((b + i) not in self.used for i in range(n)):
                    for i in range(n):
                        self.used[b + i] = name
                    self.high = max(self.high, b + n)
                    return Reg(self.kind, b, n)
                b -= align
            raise RuntimeError(f"out of {self.kind} regs for {name} n={n}; used={len(self.used)}")
        b = (self.lo + align - 1) // align * align
        while b + n <= self.hi:
            if all((b + i) not in self.used for i in range(n)):
                for i in range(n):
                    self.used[b + i] = name
                self.high = max(self.high, b + n)
                return Reg(self.kind, b, n)
            b += align
        raise RuntimeError(f"out of {self.kind} regs for {name} n={n}; used={len(self.used)}")

    def at(self, b, n, name=''):
        for i in range(n):
            assert (b + i) not in self.used, (self.kind, b + i, self.used[b + i], name)
            self.used[b + i] = name
        self.high = max(self.high, b + n)
        return Reg(self.kind, b, n)

    def free(self, *regs):
        for r in regs:
            if isinstance(r, (list, tuple)):
                self.free(*r)
                continue
            for i in range(r.n):
                del self.used[r.base + i]


_REG = re.compile(r'^(-?)(\|?|abs\()?([vas])(\d+|\[(\d+):(\d+)\])\)?\|?$')


def regs_of(tok):
    tok = tok.strip()
    if tok in ('vcc', 'exec', 'm0', 'scc'):
        return {(tok, 0)}
    if tok in ('vcc_lo', 'vcc_hi'):
        return {('vcc', 0)}
    if tok in ('exec_lo', 'exec_hi'):
        return {('exec', 0)}
    m = _REG.match(tok)
    if not m:
        return set()
    k = m.group(3)
    if m.group(5) is not None:
        return {(k, i) for i in range(int(m.group(5)), int(m.group(6)) + 1)}
    return {(k, int(m.group(4)))}


def split_ops(s):
    out, depth, cur = [], 0, ''
    for ch in s:
        if ch in '[(':
            depth += 1
        if ch in '])':
            depth -= 1
        if ch == ',' and depth == 0:
            out.append(cur.strip())
            cur = ''
        else:
            cur += ch
    if cur.strip():
        out.append(cur.strip())
    return out


class Ins:
    def __init__(self, text):
        self.text = text
        t = text.split(';')[0].strip()
        self.label = None
        self.op = ''
        self.defs, self.uses = set(), set()
        self.A = self.B = self.C = set()
        self.data = set()
        self.target = None
        self.ws = 1
        if not t:
            self.ws = 0
            return
        if t.endswith(':'):
            self.label = t[:-1]
            self.ws = 0
            return
        if t.startswith('.'):
            self.op = t
            self.ws = 0
            return
        parts = t.split(None, 1)
        op = parts[0]
        self.op = op
        rest = parts[1] if len(parts) > 1 else ''
        ops = split_ops(rest)
        mods = ''
        if ops:
            lp = ops[-1].split(None, 1)
            if len(lp) > 1:
                ops[-1], mods = lp[0], lp[1]
        self.mods = mods
        rs = [regs_of(o) for o in ops]
        U = lambda l: set().union(*l) if l else set()
        self.valu = op.startswith('v_') and not op.startswith('v_mfma')
        self.mfma = op.startswith('v_mfma')
        self.salu = op.startswith('s_')
        self.vmem = op.startswith(('buffer_', 'global_'))
        self.ds = op.startswith('ds_')
        self.dpp = '_dpp' in op or 'row_' in mods or 'quad_perm' in mods
        self.trans = any(op.startswith(x) for x in TRANS)
        self.lds_dma = self.vmem and re.search(r'\blds\b', mods) is not None
        if op == 's_nop':
            self.ws = int(ops[0], 0) + 1
        elif op.startswith(('s_branch', 's_cbranch')):
            self.target = ops[0]
            if 'vcc' in op:
                self.uses = {('vcc', 0)}
            elif 'scc' in op:
                self.uses = {('scc', 0)}
        elif self.mfma:
            self.defs = rs[0]
            self.A, self.B, self.C = rs[1], rs[2], rs[3]
            self.uses = self.A | self.B | self.C
        elif op.startswith('v_cmp'):
            self.defs = rs[0]
            self.uses = U(rs[1:])
        elif op.startswith(('v_swap', 'v_permlane')):
            self.defs = U(rs[:2])
            self.uses = U(rs[:2])
        elif op.startswith(('v_fmac', 'v_dot2c', 'v_pk_fmac')):
            self.defs = rs[0]
            self.uses = U(rs)
        elif op.startswith(('v_add_co', 'v_addc_co', 'v_sub_co')):
            self.defs = rs[0] | rs[1]
            self.uses = U(rs[2:])
        elif self.valu:
            self.defs = rs[0]
            self.uses = U(rs[1:])
            if self.dpp:
                self.uses |= rs[0] if 'bound_ctrl' not in mods and False else set()
        elif op.startswith('ds_read'):
            self.defs = rs[0]
            self.uses = U(rs[1:])
        elif op.startswith(('ds_write', 'ds_add')):
            self.uses = U(rs)
        elif op.startswith(('buffer_load', 'global_load')):
            if self.lds_dma:
                self.uses = U(rs) | {('m0', 0)}
            else:
                self.defs = rs[0]
                self.uses = U(rs[1:])
        elif op.startswith('buffer_store'):
            self.uses = U(rs)
            self.data = rs[0]
        elif op.startswith('global_store'):
            self.uses = U(rs)
            self.data = rs[1]
        elif op.startswith(('s_cmp', 's_bitcmp')):
            self.uses = U(rs)
            self.defs = {('scc', 0)}
        elif op.startswith(('s_waitcnt', 's_barrier', 's_endpgm', 's_sleep', 's_setprio')):
            pass
        elif self.salu:
            self.defs = rs[0] if rs else set()
            self.uses = U(rs[1:])
        else:
            raise RuntimeError("unparsed: " + text)

    @property
    def real(self):
        return self.ws > 0


def need(p, c):
    n = 0
    if not p.real or not c.real or not p.op or not c.op:
        return 0
    vg = lambda s: {r for r in s if r[0] in 'va' and r[0] != 'vcc'}
    sg = lambda s: {r for r in s if r[0] in ('s', 'vcc')}
    if p.op == 's_nop' or c.op == 's_nop':
        return 0
    pv = getattr(p, 'valu', False)
    cv = getattr(c, 'valu', False)
    if pv:
        d = vg(p.defs)
        if c.mfma and d & c.uses:
            n = max(n, 2)
        if cv and d & c.uses:
            if c.dpp or c.op.startswith('v_permlane'):
                n = max(n, 2)
            if c.op.startswith(('v_readlane', 'v_readfirstlane')):
                n = max(n, 1)
            if p.trans and not c.trans:
                n = max(n, 1)
            if 'sdwa' in p.op and 'dst_sel:DWORD' not in p.mods:
                n = max(n, 1)
        s = sg(p.defs)
        if s:
            if cv and s & (c.uses | ({('vcc', 0)} if c.op.startswith(('v_cndmask_b32', 'v_addc')) else set())):
                n = max(n, 4 if c.op.startswith(('v_readlane', 'v_writelane')) else 2)
            if c.vmem and s & c.uses:
                n = max(n, 5)
    if p.mfma:
        passes = 8 if '32x32' in p.op else 4
        d = p.defs
        if c.mfma:
            if d & (c.A | c.B):
                n = max(n, passes + 4)
            if d & c.C and d != c.C:
                n = max(n, passes + 2)
            if d & c.defs and not (d == c.defs):
                n = max(n, passes + 2)
            if d == c.defs and c.C != d:
                n = max(n, passes + 2)
        elif (cv or c.vmem or c.ds) and d & (c.uses | c.defs):
            n = max(n, passes + 4)
        if cv and p.C & c.defs:
            n = max(n, passes - 1)
    if p.salu and ('m0', 0) in p.defs and getattr(c, 'lds_dma', False):
        n = max(n, 1)
    if p.vmem and p.data and len(p.data) >= 3 and p.data & c.defs:
        n = max(n, 2)
    return n


class Prog:
    def __init__(self):
        self.ins = []
        self.vm = []
        self.lg = []
        self.nlab = 0
        self.seen = set()

    def __call__(self, text):
        for line in text.split('\n'):
            if line.strip():
                self.ins.append(Ins('  ' + line.strip() if not line.strip().endswith(':') else line.strip()))

    def label(self, base):
        self.nlab += 1
        return f"L_{base}_{self.nlab}"

    def vmem(self, text, tag=None):
        self(text)
        self.vm.append(tag)
        self.seen.add(tag)

    def vmem_maybe(self, text):
        self(text)

    def dsop(self, text, tag=None):
        self(text)
        self.lg.append(tag)
        self.seen.add(tag)

    @staticmethod
    def _cnt(lst, tags):
        last = -1
        for i, t in enumerate(lst):
            if t in tags:
                last = i
        if last < 0:
            return None
        return len(lst) - 1 - last

    def wait(self, vm=None, lg=None):
        s = ''
        if vm is not None:
            tags = vm if isinstance(vm, (list, set)) else [vm]
            assert vm == 'all' or all(t in self.seen for t in tags), tags
            n = 0 if vm == 'all' else self._cnt(self.vm, tags)
            if n is not None:
                n = min(n, 63)
                s += f" vmcnt({n})"
                self.vm = self.vm[len(self.vm) - n:] if n else []
        if lg is not None:
            tags = lg if isinstance(lg, (list, set)) else [lg]
            assert lg == 'all' or all(t in self.seen for t in tags), tags
            n = 0 if lg == 'all' else self._cnt(self.lg, tags)
            if n is not None:
                n = min(n, 15)
                s += f" lgkmcnt({n})"
                self.lg = self.lg[len(self.lg) - n:] if n else []
        if s:
            self("s_waitcnt" + s)

    def pad(self):
        ins = self.ins
        changed = True
        total = 0
        while changed:
            changed = False
            labels = {x.label: i for i, x in enumerate(ins) if x.label}
            srcs = {}
            for i, x in enumerate(ins):
                if x.target:
                    srcs.setdefault(x.target, []).append(i)
            out = []
            inserted = {}
            for i, c in enumerate(ins):
                if not c.real or c.op == 's_nop':
                    continue
                worst = 0
                stack = [(i - 1, 0)]
                seen = set()
                while stack:
                    j, dist = stack.pop()
                    while j >= 0 and dist < 14:
                        key = (j, dist)
                        if key in seen:
                            break
                        seen.add(key)
                        p = ins[j]
                        if p.label:
                            for sidx in srcs.get(p.label, []):
                                stack.append((sidx, dist))
                            k = j - 1
                            while k >= 0 and not ins[k].real and not ins[k].label:
                                k -= 1
                            if k >= 0 and ins[k].op in ('s_branch', 's_endpgm'):
                                break
                            j -= 1
                            continue
                        if p.real:
                            nd = need(p, c) - dist
                            worst = max(worst, nd)
                            dist += p.ws + inserted.get(j, 0)
                        j -= 1
                if worst > 0:
                    inserted[i] = worst
            if inserted:
                for i, c in enumerate(ins):
                    if i in inserted:
                        out.append(Ins(f"  s_nop {inserted[i] - 1}"))
                        total += inserted[i]
                    out.append(c)
                ins = out
                self.ins = ins
                changed = True
        return total

    def text(self):
        return '\n'.join(x.text for x in self.ins) + '\n'


def interleave(*streams):
    out = []
    n = max(len(s) for s in streams)
    for i in range(n):
        for s in streams:
            if i < len(s):
                out.append(s[i])
    return out
```

```python
import sys, os, math, struct
sys.path.insert(0, os.path.dirname(os.path.abspath(__file__)))
from asmlib import *

NAME = "sequential_preLN__linear_kernel_hedgehog__dense_activation_gelu__prompt_kernel"

WS_EPOCH = 0
WS_XCC = 0x1000
WS_F2 = 0x2000
WS_F3 = 0x4000
WS_F4 = 0x6000
WS_OUTBOX = 0x10000
WS_STATS = 0x20000
WS_STAMP = 0x100000
WS_INBOX = 0x200000
WS_O = 0x400000
WS_H = 0x600000
WS_H1 = 0x800000
WS_SIZE = 0x1000000

L_X = 0
L_R = 65536
L_Q = 98304
L_XR = 0
L_ST = 8192
L_CS = 9216
L_WO = 12288
L_W1 = 49152
L_STG = 0
LDS_BYTES = 163840


def f2u(x):
    return struct.unpack('<I', struct.pack('<f', x))[0]


def gen(cfg):
    STAMPS = cfg.get('stamps', False)
    STOP = cfg.get('stop', 99)
    SPIN = cfg.get('spin', 1 << 18)
    FORCE_SLOW = cfg.get('slow', False)
    PLAIN_O = cfg.get('plain_o', True)
    PLAIN_H = cfg.get('plain_h', True)
    OUT_SC = cfg.get('out_sc', 'sc1')
    G1_AT = cfg.get('g1_at', 8)
    P = Prog()
    V = Alloc('v', 1, 256)
    S = Alloc('s', 3, 102)
    vPOLL = V.at(2, 2, 'poll')
    vt = [V(1, name=f'vt{i}') for i in range(6)]
    vN, vG, vPP, vL16, vTAG, vL4 = [V(1, name=n) for n in ['n', 'g', 'pp', 'l16', 'tag', 'l4']]
    voB = [V(1, name=f'voB{m}') for m in range(4)]
    vTB = [V(1, name=f'tb{j}') for j in range(4)]

    srd = {}
    for i, nm in enumerate(['x', 'wqkv', 'wo', 'w1', 'w2', 'ws', 'out', 'wphi', 'b1', 'b2']):
        srd[nm] = S.at(8 + 4 * i, 4, nm)
    karg = dict(x=0, wqkv=8, wphi=16, wo=24, w1=40, b1=48, w2=56, b2=64, out=72, ws=88)
    size = dict(x=2048 * 1024, wqkv=512 * 3072, wphi=32 * 512, wo=512 * 1024, w1=512 * 3584, b1=3584,
                w2=1792 * 1024, b2=1024, out=2048 * 1024, ws=WS_SIZE)

    sW, sRB, sHQ, sROT, sTAG, sFAST, sIC, sRB128 = [S(1, name=n) for n in
                                                    ['w', 'rb', 'hq', 'rot', 'tag', 'fast', 'ic', 'rb128']]
    sT = [S(1, name=f't{i}') for i in range(6)]
    sCNT = S(1, name='cnt')
    sM = [S(2, name=f'm{i}') for i in range(3)]
    sK = S(2, name='k')
    stamps = []

    if STAMPS:
        sST = [S(2, name='stamp0'), S(2, name='stamp1'), S(2, name='stamp2')]
        vST = V.at(1, 1, 'stamps')

    def stamp(name):
        if STAMPS:
            k = len(stamps)
            if k >= 2:
                P(f"v_writelane_b32 {vST}, {sST[(k - 2) % 3][0]}, {k - 2}")
            stamps.append((name, None))
            P(f"s_memtime {sST[k % 3]}")

    def finish():
        if STAMPS:
            stamp('end')
            r2 = S(2, name='rt')
            P(f"s_memrealtime {r2}")
            P("s_waitcnt lgkmcnt(0)")
            k = len(stamps)
            for i in (k - 2, k - 1):
                P(f"v_writelane_b32 {vST}, {sST[i % 3][0]}, {i}")
            for i, r in enumerate([sRT0[0], r2[0], sFAST]):
                P(f"v_writelane_b32 {vST}, {r}, {61 + i}")
            P(f"s_lshl_b32 {sT[0]}, s2, 2\ns_add_u32 {sT[0]}, {sT[0]}, {sW}\ns_lshl_b32 {sT[0]}, {sT[0]}, 8")
            P(f"s_add_u32 {sT[0]}, {sT[0]}, {WS_STAMP}")
            P(f"v_lshlrev_b32 {vt[0]}, 2, v0")
            P(f"buffer_store_dword {vST}, {vt[0]}, {srd['ws']}, {sT[0]} offen")
        P("s_waitcnt vmcnt(0)")
        P("L_end:")
        P("s_endpgm")

    P("s_cmp_ge_u32 s2, 256\ns_cbranch_scc1 L_end")
    for nm in ['x', 'wqkv', 'ws', 'wo', 'wphi', 'w1', 'w2', 'out', 'b1', 'b2']:
        P(f"s_load_dwordx2 {srd[nm][0:2]}, s[0:1], {karg[nm]}")
    if STAMPS:
        sRT0 = S(2, name='rt0')
        P(f"s_memrealtime {sRT0}")
    stamp('start')
    P(f"""v_lshrrev_b32 {vt[0]}, 6, v0
    s_lshr_b32 {sT[0]}, s2, 3
    v_and_b32 {vt[1]}, 3, v0
    v_readfirstlane_b32 {sW}, {vt[0]}
    s_and_b32 {sHQ}, {sT[0]}, 7
    s_lshr_b32 {sT[1]}, {sT[0]}, 3
    s_and_b32 {sRB}, s2, 7
    s_lshl_b32 {sRB}, {sRB}, 2
    s_add_u32 {sRB}, {sRB}, {sT[1]}
    s_add_u32 {sROT}, {sT[1]}, {sHQ}
    s_and_b32 {sROT}, {sROT}, 3""")
    if cfg.get('codepf', True):
        pa = V(2, name='pa')
        P(f"""v_lshl_add_u32 {vt[1]}, {vt[0]}, 2, {vt[1]}
        s_lshl_b32 {sT[2]}, {sT[0]}, 4
        v_add_u32 {vt[1]}, {sT[2]}, {vt[1]}
        v_lshlrev_b32 {vt[1]}, 7, {vt[1]}
        s_getpc_b64 {sK}
        v_min_u32 {vt[1]}, L_end-{NAME}-256, {vt[1]}
        v_mov_b32 {pa[1]}, {sK[1]}
        v_add_co_u32 {pa[0]}, vcc, {sK[0]}, {vt[1]}
        v_addc_co_u32 {pa[1]}, vcc, 0, {pa[1]}, vcc
        s_mov_b64 exec, 15""")
        P.vmem(f"global_load_dword {vt[5]}, {pa}, off", 'pf')
        P("s_mov_b64 exec, -1")
        V.free(pa)
    P(f"v_and_b32 v0, 63, v0")
    voX = [V(1, name=f'voX{m}') for m in range(4)]
    voW = [V(1, name=f'voW{m}') for m in range(2)]
    P(f"""v_and_b32 {vN}, 15, v0
    v_lshrrev_b32 {vG}, 4, v0
    v_xor_b32 {vt[0]}, {vN}, {vG}
    v_lshlrev_b32 {vt[0]}, 4, {vt[0]}
    v_lshl_or_b32 {voX[0]}, {vG}, 10, {vt[0]}""")
    for m in range(1, 4):
        P(f"v_xor_b32 {voX[m]}, {64 * m}, {voX[0]}\nv_add_u32 {voX[m]}, {3072 * m}, {voX[m]}")
    vCH = V(1, name='ch')
    P(f"""v_lshrrev_b32 {vPP}, 3, v0
    v_and_b32 {vt[0]}, 6, {vPP}
    v_and_b32 {vt[1]}, 7, v0
    v_xor_b32 {vCH}, {vt[0]}, {vt[1]}
    v_lshlrev_b32 {vCH}, 4, {vCH}
    v_and_b32 {vt[0]}, 4, {vPP}
    v_add_u32 {vt[0]}, {vt[0]}, {vPP}
    v_mul_u32_u24 {vt[0]}, 3072, {vt[0]}
    v_add_u32 {voW[0]}, {vt[0]}, {vCH}
    v_add_u32 {voW[1]}, {49152 - 1024}, {voW[0]}""")
    for nm in srd:
        P(f"s_mov_b32 {srd[nm][2]}, {size[nm]}\ns_mov_b32 {srd[nm][3]}, 0x20000")
    sXB, sWB = S(1, name='xb'), S(1, name='wb')
    sCK = [S(1, name=f'ck{p}') for p in range(4)]
    sW2K = S(1, name='w2k')
    P(f"""s_lshl_b32 {sXB}, {sRB}, 2
    s_add_u32 {sXB}, {sXB}, {sW}
    s_lshl_b32 {sXB}, {sXB}, 14
    s_and_b32 {sT[0]}, {sW}, 1
    s_mul_i32 {sT[0]}, {sT[0]}, 12288
    s_lshr_b32 {sT[1]}, {sW}, 1
    s_add_u32 {sT[1]}, {sT[1]}, 1
    s_lshl_b32 {sT[1]}, {sT[1]}, 10
    s_add_u32 {sWB}, {sT[0]}, {sT[1]}
    s_lshl_b32 {sT[0]}, {sHQ}, 7
    s_add_u32 {sWB}, {sWB}, {sT[0]}
    s_lshl_b32 {sW2K}, {sW}, 11""")
    for p in range(4):
        P(f"s_add_u32 {sCK[p]}, {sROT}, {p}\ns_and_b32 {sCK[p]}, {sCK[p]}, 3")

    def dma_x(p):
        P(f"""s_lshl_b32 {sT[0]}, {sCK[p]}, 8
        s_add_u32 {sT[0]}, {sT[0]}, {sXB}
        s_lshl_b32 {sT[1]}, {sW2K}, 1
        s_add_u32 m0, {sT[1]}, {L_X + p * 16384}""")
        for m in range(4):
            P.vmem(f"buffer_load_dwordx4 {voX[m]}, {srd['x']}, {sT[0]} offen offset:{1024 * m} lds", ('X', p))

    def dma_w(s):
        p, sp = s >> 2, s & 3
        if sp == 0:
            P(f"s_mul_i32 {sT[2]}, {sCK[p]}, 393216\ns_add_u32 {sT[2]}, {sT[2]}, {sWB}")
        else:
            P(f"s_add_u32 {sT[2]}, {sT[2]}, 98304")
        P(f"s_add_u32 m0, {sW2K}, {L_R + (s % 12) * 8192}")
        for gp in range(2):
            P.vmem(f"buffer_load_dwordx4 {voW[gp]}, {srd['wqkv']}, {sT[2]} offen offset:{1024 * gp} lds", ('W', s))

    P("s_waitcnt lgkmcnt(0)")
    P(f"s_load_dword {sTAG}, {srd['ws'][0:2]}, {WS_EPOCH}")
    stamp('karg')
    for p in range(3):
        dma_x(p)
        for s in range(4 * p, 4 * p + 4):
            dma_w(s)
    dma_x(3)
    V.free(voX)

    P(f"s_lshr_b32 {sRB128}, {sRB}, 1\ns_and_b32 {sIC}, {sRB}, 1\ns_lshl_b32 {sIC}, {sIC}, 3\ns_add_u32 {sIC}, {sIC}, {sHQ}")
    P(f"s_getreg_b32 {sFAST}, hwreg(HW_REG_XCC_ID, 0, 4)")
    P(f"v_lshlrev_b32 {vL16}, 4, v0")
    vXA = [[V(1, name=f'xa{u}{k}') for k in range(4)] for u in range(4)]
    P(f"""v_xor_b32 {vt[0]}, {vN}, {vG}
    v_lshlrev_b32 {vt[0]}, 4, {vt[0]}
    v_lshl_or_b32 {vt[0]}, {vN}, 8, {vt[0]}
    s_lshl_b32 {sT[0]}, {sW}, 12
    v_or_b32 {vXA[0][0]}, {sT[0]}, {vt[0]}""")
    for u in range(4):
        for k in range(4):
            if u or k:
                P(f"v_xor_b32 {vXA[u][k]}, {(u << 12) | (k << 6)}, {vXA[0][0]}")
    vTR0 = V(1, name='tr0')
    P(f"""v_lshrrev_b32 {vt[0]}, 2, v0
    v_lshlrev_b32 {vt[1]}, 7, {vt[0]}
    v_and_b32 {vt[2]}, 3, v0
    v_lshl_or_b32 {vt[1]}, {vt[2]}, 3, {vt[1]}
    v_and_b32 {vt[0]}, 6, {vt[0]}
    v_lshl_or_b32 {vTR0}, {vt[0]}, 4, {vt[1]}""")
    vWA = [V(1, name='wa0'), V(1, name='wa1')]
    P(f"""s_lshl_b32 {sT[0]}, {sW}, 5
    v_xor_b32 {vt[0]}, {sT[0]}, {vTR0}
    v_add_u32 {vWA[0]}, {L_R}, {vt[0]}
    v_add_u32 {vWA[1]}, {L_R + 65536}, {vt[0]}""")
    vONE = V(4, name='ones')
    for i in range(4):
        P(f"v_mov_b32 {vONE[i]}, 0x3f803f80")
    vID, vIS = V(2, name='ident'), V(2, name='isum')
    P(f"v_and_b32 {vt[0]}, 3, v0")
    for i in range(3):
        P(f"v_cmp_eq_u32 {sM[i]}, {i + 1}, {vt[0]}")
    P(f"""v_mov_b32 {vt[1]}, 0x3f80
    v_mov_b32 {vt[2]}, 0x3f800000
    v_mov_b32 {vt[3]}, 0
    v_cndmask_b32 {vIS[0]}, {vt[1]}, {vt[2]}, {sM[0]}
    v_cndmask_b32 {vIS[1]}, {vt[2]}, {vt[1]}, {sM[1]}
    v_cmp_gt_u32 vcc, 2, {vt[0]}
    v_lshrrev_b32 {vt[4]}, 2, {vN}
    v_cndmask_b32 {vIS[0]}, {vt[3]}, {vIS[0]}, vcc
    v_cndmask_b32 {vIS[1]}, {vIS[1]}, {vt[3]}, vcc""")
    sDIAG = S(2, name='diag')
    P(f"""v_cmp_eq_u32 {sDIAG}, {vt[4]}, {vG}
    v_cndmask_b32 {vID[0]}, {vt[3]}, {vIS[0]}, {sDIAG}
    v_cndmask_b32 {vID[1]}, {vt[3]}, {vIS[1]}, {sDIAG}""")
    P("s_waitcnt lgkmcnt(0)")
    P(f"s_mul_i32 {sTAG}, {sTAG}, 0x9E3779B1\ns_add_u32 {sTAG}, {sTAG}, 0x7F4A7C15")
    rec = V(2, name='rec')
    P(f"""v_mov_b32 {vTAG}, {sTAG}
    v_mov_b32 {rec[0]}, {sFAST}
    v_mov_b32 {rec[1]}, {sTAG}
    s_lshl_b32 {sT[0]}, {sRB128}, 4
    s_add_u32 {sT[0]}, {sT[0]}, {sIC}
    s_lshl_b32 {sT[0]}, {sT[0]}, 3
    s_add_u32 {sT[0]}, {sT[0]}, {WS_XCC}
    v_mov_b32 {vt[0]}, 0""")
    lab = P.label('xcc')
    P(f"s_cmp_lg_u32 {sW}, 0\ns_cbranch_scc1 {lab}\ns_mov_b64 exec, 1")
    P.vmem_maybe(f"buffer_store_dwordx2 {rec}, {vt[0]}, {srd['ws']}, {sT[0]} offen sc1")
    P(f"s_mov_b64 exec, -1\n{lab}:")
    vPH = V(4, name='phraw')
    P(f"""v_lshlrev_b32 {vt[1]}, 1, {vN}
    v_lshl_or_b32 {vt[1]}, {vG}, 7, {vt[1]}
    s_lshl_b32 {sT[0]}, {sHQ}, 2
    s_add_u32 {sT[0]}, {sT[0]}, {sW}
    s_lshl_b32 {sT[0]}, {sT[0]}, 9""")
    for i in range(4):
        P.vmem(f"buffer_load_ushort {vPH[i]}, {vt[1]}, {srd['wphi']}, {sT[0]} offen offset:{32 * i}", 'phi')
    V.free(rec)

    aX = Reg('a', 0, 256)
    xf = lambda s, u: aX.sub(s * 16 + u * 4, 4)
    accK = [V(4, name=f'k{u}') for u in range(4)]
    accV = [V(4, name=f'v{u}') for u in range(4)]
    gG, gS, csK, csV = V(4, name='G'), V(4, name='S'), V(4, name='csk'), V(4, name='csv')
    wf = [[V(4, name=f'wf{b}{t}') for t in range(2)] for b in range(2)]
    sQB = S(1, name='qb')
    P(f"""s_and_b32 {sT[0]}, {sW}, 1
    s_mul_i32 {sT[0]}, {sT[0]}, 49152
    s_lshr_b32 {sT[1]}, {sW}, 1
    s_mul_i32 {sT[1]}, {sT[1]}, 12288
    s_add_u32 {sQB}, {sT[0]}, {sT[1]}
    s_lshl_b32 {sT[0]}, {sHQ}, 7
    s_add_u32 {sQB}, {sQB}, {sT[0]}""")

    def dma_q(t):
        p, sp = t >> 2, t & 3
        if sp == 0:
            P(f"s_mul_i32 {sT[3]}, {sCK[p]}, 393216\ns_add_u32 {sT[3]}, {sT[3]}, {sQB}")
        else:
            P(f"s_add_u32 {sT[3]}, {sT[3]}, 98304")
        P(f"s_lshr_b32 {sT[0]}, {sW2K}, 1\ns_add_u32 m0, {sT[0]}, {L_Q + t * 4096}")
        P.vmem(f"buffer_load_dwordx4 {voW[0]}, {srd['wqkv']}, {sT[3]} offen lds", ('Q', t))

    def rd_a(s):
        p, sp = s >> 2, s & 3
        for u in range(4):
            P.dsop(f"ds_read_b128 {xf(s, u)}, {vXA[u][sp]} offset:{L_X + p * 16384}", ('A', s))
        slot = s % 12
        va, off = (vWA[0], slot * 8192) if slot < 8 else (vWA[1], (slot - 8) * 8192)
        for t in range(2):
            for hf in range(2):
                P.dsop(f"ds_read_b64_tr_b16 {wf[s & 1][t].sub(2 * hf, 2)}, {va} offset:{off + t * 4096 + hf * 2048}", ('A', s))

    M32 = "v_mfma_f32_16x16x32_bf16"
    M16 = "v_mfma_f32_16x16x16_bf16"

    def mf(d, a, b, first, op=M32):
        P(f"{op} {d}, {a}, {b}, {'0' if first else d}")

    def mm_a(s):
        k, v = wf[s & 1]
        f = s == 0
        for u in range(4):
            mf(accK[u], k, xf(s, u), f)
        mf(gG, xf(s, 0), xf(s, 0), f)
        mf(csK, k, vONE, f)
        for u in range(4):
            mf(accV[u], v, xf(s, u), f)
        mf(gS, vONE, xf(s, 0), f)
        mf(csV, v, vONE, f)

    P(f"v_lshl_add_u32 {voB[0]}, {vPP}, 10, {vCH}")
    for m in range(1, 4):
        P(f"v_add_u32 {voB[m]}, {7168 * m}, {voB[0]}")
    V.free(vCH)

    def dma_xres():
        t = vt[0]
        P(f"""v_and_b32 {t}, 7, v0
        v_xor_b32 {t}, {t}, {vPP}
        v_lshlrev_b32 {t}, 4, {t}
        v_lshl_or_b32 {t}, {vPP}, 10, {t}
        s_lshl_b32 {sT[0]}, {sHQ}, 7
        s_add_u32 {sT[0]}, {sT[0]}, {sXB}
        s_add_u32 m0, {sW2K}, {L_XR}""")
        P.vmem(f"buffer_load_dwordx4 {t}, {srd['x']}, {sT[0]} offen lds", 'xres')
        P(f"s_add_u32 {sT[0]}, {sT[0]}, {8192 - 1024}")
        P.vmem(f"buffer_load_dwordx4 {t}, {srd['x']}, {sT[0]} offen offset:1024 lds", 'xres')

    def dma_wo(q):
        P(f"""s_lshl_b32 {sT[0]}, {sW}, 17
        s_lshl_b32 {sT[1]}, {sHQ}, 7
        s_add_u32 {sT[0]}, {sT[0]}, {sT[1]}
        s_add_u32 {sT[0]}, {sT[0]}, {q * 32768}
        s_lshl_b32 {sT[1]}, {sW}, 14
        s_add_u32 m0, {sT[1]}, {L_WO + q * 4096}""")
        for m in range(4):
            P.vmem(f"buffer_load_dwordx4 {voB[m]}, {srd['wo']}, {sT[0]} offen offset:{1024 * m} lds", 'wo')

    P.wait(vm=('W', 0))
    P("s_barrier")
    stamp('a0')
    rd_a(0)
    for s in range(16):
        if s < 15:
            P.wait(vm=('W', s + 1))
            P("s_barrier")
            rd_a(s + 1)
            if 1 <= s <= 4:
                dma_w(12 + s - 1)
            if 5 <= s <= 12:
                dma_q(2 * (s - 5))
                dma_q(2 * (s - 5) + 1)
            if s == 13:
                dma_xres()
        P.wait(lg=('A', s))
        mm_a(s)
    stamp('a1')
    V.free(vXA, wf[1])
    P(f"""v_cndmask_b32 {vt[0]}, {gG[0]}, {gG[1]}, {sM[0]}
    v_mul_f32 {vt[1]}, {f2u(1 / 512)}, {gS[0]}
    v_cndmask_b32 {vt[0]}, {vt[0]}, {gG[2]}, {sM[1]}
    v_cndmask_b32 {vt[0]}, {vt[0]}, {gG[3]}, {sM[2]}
    v_mul_f32 {vt[2]}, {vt[1]}, {vt[1]}
    v_mov_b32 {vt[3]}, {f2u(1 / 512)}
    v_fma_f32 {vt[0]}, {vt[0]}, {vt[3]}, -{vt[2]}
    v_max_f32 {vt[0]}, 0, {vt[0]}
    v_add_f32 {vt[0]}, {f2u(1e-5)}, {vt[0]}
    v_rsq_f32 {gG[0]}, {vt[0]}
    s_lshl_b32 {sT[0]}, {sW}, 7
    v_lshl_add_u32 {vt[4]}, {vN}, 3, {sT[0]}
    v_mul_f32 {gG[1]}, -{vt[1]}, {gG[0]}
    s_mov_b64 exec, {sDIAG}""")
    P.dsop(f"ds_write_b64 {vt[4]}, {gG[0:2]} offset:{L_ST}", 'st')
    P("s_mov_b64 exec, -1")
    P.wait(lg='all')
    P("s_barrier")
    st = [V(2, name=f'st{u}') for u in range(4)]
    for u in range(4):
        if u:
            P(f"v_xor_b32 {vt[u]}, {u << 7}, {vt[4]}")
        P.dsop(f"ds_read_b64 {st[u]}, {vt[u] if u else vt[4]} offset:{L_ST}", 'st')
    V.free(gG, gS)
    for q in range(cfg.get('wo_early', 2)):
        dma_wo(q)
    P.wait(vm='phi')
    vPHI = V(2, name='phi')
    P(f"v_lshl_or_b32 {vPHI[0]}, {vPH[1]}, 16, {vPH[0]}\nv_lshl_or_b32 {vPHI[1]}, {vPH[3]}, 16, {vPH[2]}")
    V.free(vPH)
    P.wait(lg='st')

    LO = "op_sel:[0,0] op_sel_hi:[1,0]"
    HI = "op_sel:[0,1] op_sel_hi:[1,1]"

    def fold(acc, cs, dst):
        tmp = [V(4) for u in range(4)]
        streams = []
        for u in range(4):
            streams.append([
                f"v_pk_mul_f32 {tmp[u][0:2]}, {cs[0:2]}, {st[u]} {HI}",
                f"v_pk_mul_f32 {tmp[u][2:4]}, {cs[2:4]}, {st[u]} {HI}",
                f"v_pk_fma_f32 {acc[u][0:2]}, {acc[u][0:2]}, {st[u]}, {tmp[u][0:2]} op_sel:[0,0,0] op_sel_hi:[1,0,1]",
                f"v_pk_fma_f32 {acc[u][2:4]}, {acc[u][2:4]}, {st[u]}, {tmp[u][2:4]} op_sel:[0,0,0] op_sel_hi:[1,0,1]",
                f"v_cvt_pk_bf16_f32 {dst[u][0]}, {acc[u][0]}, {acc[u][1]}",
                f"v_cvt_pk_bf16_f32 {dst[u][1]}, {acc[u][2]}, {acc[u][3]}"])
        for x in interleave(*streams):
            P(x)
        V.free(tmp)

    P(f"s_mov_b32 {sK[0]}, {f2u(math.log2(math.e))}\ns_mov_b32 {sK[1]}, {f2u(-math.log2(math.e))}")

    def xreduce(a0, a1, b0, b1, op, mid):
        return [
            f"v_permlane32_swap_b32 {a0}, {a1}",
            f"v_permlane32_swap_b32 {b0}, {b1}",
            f"{op} {a0}, {a0}, {a1}",
            f"{op} {b0}, {b0}, {b1}",
            f"v_permlane16_swap_b32 {a0}, {b0}",
            f"{op} {a0}, {a0}, {b0}",
            mid(a0),
            f"v_mov_b32 {b0}, {a0}",
            f"v_permlane16_swap_b32 {a0}, {b0}",
            f"v_mov_b32 {a1}, {a0}",
            f"v_mov_b32 {b1}, {b0}",
            f"v_permlane32_swap_b32 {a0}, {a1}",
            f"v_permlane32_swap_b32 {b0}, {b1}"]

    def softmax(acc, cs, out, hook=None):
        qb = [V(2) for u in range(4)]
        fold(acc, cs, qb)
        p = acc
        for u in range(4):
            mf(p[u], vPHI, qb[u], True, M16)
        V.free(qb)
        mx = [V(2) for u in range(4)]
        en = [V(4) for u in range(4)]
        streams = []
        for u in range(4):
            streams.append([
                f"v_max3_f32 {mx[u][0]}, {p[u][0]}, {p[u][1]}, {p[u][2]}",
                f"v_max3_f32 {mx[u][1]}, -{p[u][0]}, -{p[u][1]}, -{p[u][2]}",
                f"v_max_f32 {mx[u][0]}, {mx[u][0]}, {p[u][3]}",
                f"v_max_f32_e64 {mx[u][1]}, {mx[u][1]}, -{p[u][3]}"])
        for x in interleave(*streams):
            P(x)
        mid = lambda r: f"v_mul_f32 {r}, {sK[1]}, {r}"
        for x in interleave(*[xreduce(mx[a][0], mx[a][1], mx[a + 1][0], mx[a + 1][1], "v_max_f32", mid) for a in (0, 2)]):
            P(x)
        if hook:
            hook(0)
        streams = []
        for u in range(4):
            s_ = []
            for h in range(2):
                s_.append(f"v_pk_fma_f32 {en[u].sub(2 * h, 2)}, {p[u].sub(2 * h, 2)}, {sK}, {mx[u]} op_sel:[0,1,1] op_sel_hi:[1,1,1]")
                s_.append(f"v_pk_fma_f32 {p[u].sub(2 * h, 2)}, {p[u].sub(2 * h, 2)}, {sK}, {mx[u]} op_sel:[0,0,0] op_sel_hi:[1,0,0]")
            for r in range(4):
                s_.append(f"v_exp_f32 {p[u][r]}, {p[u][r]}")
                s_.append(f"v_exp_f32 {en[u][r]}, {en[u][r]}")
            streams.append(s_)
        for x in interleave(*streams):
            P(x)
        if hook:
            hook(1)
        tm = [V(4) for u in range(4)]
        streams = []
        for u in range(4):
            streams.append([
                f"v_pk_add_f32 {tm[u][0:2]}, {p[u][0:2]}, {p[u][2:4]}",
                f"v_pk_add_f32 {tm[u][2:4]}, {en[u][0:2]}, {en[u][2:4]}",
                f"v_add_f32 {mx[u][0]}, {tm[u][0]}, {tm[u][1]}",
                f"v_add_f32 {mx[u][1]}, {tm[u][2]}, {tm[u][3]}"])
        for x in interleave(*streams):
            P(x)
        V.free(tm)
        mid = lambda r: f"v_rcp_f32 {r}, {r}"
        for x in interleave(*[xreduce(mx[a][0], mx[a][1], mx[a + 1][0], mx[a + 1][1], "v_add_f32", mid) for a in (0, 2)]):
            P(x)
        streams = []
        for u in range(4):
            streams.append([
                f"v_pk_mul_f32 {p[u][0:2]}, {p[u][0:2]}, {mx[u]} {LO}",
                f"v_pk_mul_f32 {p[u][2:4]}, {p[u][2:4]}, {mx[u]} {LO}",
                f"v_pk_mul_f32 {en[u][0:2]}, {en[u][0:2]}, {mx[u]} {HI}",
                f"v_pk_mul_f32 {en[u][2:4]}, {en[u][2:4]}, {mx[u]} {HI}",
                f"v_cvt_pk_bf16_f32 {out[u][0]}, {p[u][0]}, {p[u][1]}",
                f"v_cvt_pk_bf16_f32 {out[u][1]}, {p[u][2]}, {p[u][3]}",
                f"v_cvt_pk_bf16_f32 {out[u][2]}, {en[u][0]}, {en[u][1]}",
                f"v_cvt_pk_bf16_f32 {out[u][3]}, {en[u][2]}, {en[u][3]}"])
        for x in interleave(*streams):
            P(x)
        V.free(mx, en)

    phk = [V(4, name=f'phk{u}') for u in range(4)]
    softmax(accK, csK, phk)
    V.free(csK)
    vb = [V(2, name=f'vb{u}') for u in range(4)]
    fold(accV, csV, vb)
    V.free(csV)
    tp = [V(4) for u in range(4)]
    pT = [[V(4, name=f'pT{sg}{pr}') for pr in range(2)] for sg in range(2)]
    vT = [V(4, name=f'vT{pr}') for pr in range(2)]
    for u in range(4):
        mf(accK[u], phk[u][0:2], vID, True, M16)
    for u in range(4):
        mf(tp[u], phk[u][2:4], vID, True, M16)
    for u in range(4):
        mf(accV[u], vb[u], vID, True, M16)
    for src, dst in ((accK, pT[0]), (tp, pT[1]), (accV, vT)):
        for u in range(4):
            d = dst[u >> 1].sub(2 * (u & 1), 2)
            P(f"v_cvt_pk_bf16_f32 {d[0]}, {src[u][0]}, {src[u][1]}\nv_cvt_pk_bf16_f32 {d[1]}, {src[u][2]}, {src[u][3]}")
    V.free(phk, vb)
    kv, zz = [accK[0], accK[1]], [accK[2], accK[3]]
    for pr in range(2):
        for sg in range(2):
            mf(kv[sg], pT[sg][pr], vT[pr], pr == 0)
        for sg in range(2):
            mf(zz[sg], pT[sg][pr], vONE, pr == 0)
    V.free(pT, vT)
    gr = [tp[0], tp[1]]
    P(f"""v_lshlrev_b32 {vt[0]}, 4, {vN}
    v_lshl_or_b32 {vt[0]}, {vG}, 13, {vt[0]}
    s_lshl_b32 {sT[0]}, {sHQ}, 2
    s_add_u32 {sT[0]}, {sT[0]}, {sW}
    s_lshl_b32 {sT[0]}, {sT[0]}, 8
    s_add_u32 {sT[0]}, {sT[0]}, {sRB}
    s_lshl_b32 {sT[0]}, {sT[0]}, 8
    s_add_u32 {sT[0]}, {sT[0]}, {WS_INBOX}
    s_add_u32 {sT[1]}, {sT[0]}, 32768""")
    streams = []
    for sg in range(2):
        streams.append([
            f"v_mov_b32 {gr[sg][3]}, {vTAG}",
            f"v_cvt_pk_bf16_f32 {gr[sg][0]}, {kv[sg][0]}, {kv[sg][1]}",
            f"v_cvt_pk_bf16_f32 {gr[sg][1]}, {kv[sg][2]}, {kv[sg][3]}",
            f"v_cndmask_b32 {gr[sg][2]}, {zz[sg][0]}, {zz[sg][1]}, {sM[0]}",
            f"v_cndmask_b32 {gr[sg][2]}, {gr[sg][2]}, {zz[sg][2]}, {sM[1]}",
            f"v_cndmask_b32 {gr[sg][2]}, {gr[sg][2]}, {zz[sg][3]}, {sM[2]}"])
    for x in interleave(*streams):
        P(x)
    for sg in range(2):
        P.vmem(f"buffer_store_dwordx4 {gr[sg]}, {vt[0]}, {srd['ws']}, {sT[sg]} offen sc1", 'slice')
    stamp('T0')
    for q in range(cfg.get('wo_early', 2), 4):
        dma_wo(q)
    V.free(tp[2:], accV)
    if STOP <= 1:
        finish()
        return P, V, S, stamps

    P.wait(vm=('Q', 15))
    P("s_barrier")
    accQ = accK
    csQ = V(4, name='csq')
    qf = [wf[0][0], wf[0][1], V(4), V(4)]
    gi = [V(4, name=f'gi{m}') for m in range(8)]
    sG1 = S(1, name='g1')
    P(f"""s_lshl_b32 {sG1}, {sHQ}, 5
    s_add_u32 {sG1}, {sG1}, {sRB}
    s_lshl_b32 {sG1}, {sG1}, 13
    s_add_u32 {sG1}, {sG1}, {WS_INBOX}""")

    def rd_q(t):
        va, off = (vWA[0], 32768 + t * 4096) if t < 8 else (vWA[1], (t - 8) * 4096)
        for hf in range(2):
            P.dsop(f"ds_read_b64_tr_b16 {qf[t & 3].sub(2 * hf, 2)}, {va} offset:{off + hf * 2048}", ('Q', t))

    def g1_loads():
        P(f"s_add_u32 {sT[0]}, {sG1}, 4096")
        for m in range(8):
            P.vmem_maybe(f"buffer_load_dwordx4 {gi[m]}, {vL16}, {srd['ws']}, {sG1 if m < 4 else sT[0]} offen offset:{1024 * (m & 3)} sc1")

    def pretouch():
        t = vt[1]
        P(f"""v_lshlrev_b32 {t}, 7, v0
        s_lshl_b32 {sT[0]}, {sRB}, 16
        s_lshl_b32 {sT[1]}, {sW}, 14
        s_add_u32 {sT[0]}, {sT[0]}, {sT[1]}
        s_lshl_b32 {sT[1]}, {sHQ}, 11
        s_add_u32 {sT[0]}, {sT[0]}, {sT[1]}
        s_mov_b64 exec, 0xffff""")
        if PLAIN_O:
            P(f"s_add_u32 {sT[1]}, {sT[0]}, {WS_O}")
            P.vmem(f"buffer_load_dword {vt[5]}, {t}, {srd['ws']}, {sT[1]} offen sc1", 'pre')
        if PLAIN_H:
            P(f"s_add_u32 {sT[1]}, {sT[0]}, {WS_H}")
            P.vmem(f"buffer_load_dword {vt[5]}, {t}, {srd['ws']}, {sT[1]} offen sc1", 'pre')
        P(f"""s_mov_b64 exec, 1
        s_lshl_b32 {sT[0]}, {sRB}, 2
        s_add_u32 {sT[0]}, {sT[0]}, {sW}
        s_lshl_b32 {sT[0]}, {sT[0]}, 3
        s_add_u32 {sT[0]}, {sT[0]}, {sHQ}
        s_lshl_b32 {sT[0]}, {sT[0]}, 7
        s_add_u32 {sT[0]}, {sT[0]}, {WS_STATS}""")
        P.vmem(f"buffer_load_dword {vt[5]}, {t}, {srd['ws']}, {sT[0]} offen sc1", 'pre')
        P(f"""s_cmp_eq_u32 {sW}, 0
        s_cselect_b32 {sT[0]}, {sRB}, {sRB128}
        s_lshl_b32 {sT[0]}, {sT[0]}, 7
        s_min_u32 {sT[1]}, {sW}, 2
        s_lshl_b32 {sT[1]}, {sT[1]}, 13
        s_add_u32 {sT[0]}, {sT[0]}, {sT[1]}
        s_add_u32 {sT[0]}, {sT[0]}, {WS_F2}""")
        P.vmem(f"buffer_load_dword {vt[5]}, {t}, {srd['ws']}, {sT[0]} offen sc1", 'pre')
        P("s_mov_b64 exec, -1")

    for t in range(3):
        rd_q(t)
    for t in range(16):
        if t + 3 < 16:
            rd_q(t + 3)
        if t == G1_AT:
            lab = P.label('g1')
            P(f"s_cmp_lg_u32 {sW}, 0\ns_cbranch_scc1 {lab}")
            g1_loads()
            P(f"{lab}:")
        if t == cfg.get('pre_at', G1_AT + 1):
            pretouch()
        P.wait(lg=('Q', t))
        for u in range(4):
            mf(accQ[u], qf[t & 3], xf(t, u), t == 0)
        mf(csQ, qf[t & 3], vONE, t == 0)
    V.free(qf, gr, vWA, voW)
    stamp('q1')
    P("s_barrier")
    lskip, lchk, lgo = P.label('own_skip'), P.label('own_chk'), P.label('own_go')
    P(f"s_cmp_lg_u32 {sW}, 0\ns_cbranch_scc1 {lskip}\ns_mov_b32 {sCNT}, 0\n{lchk}:\ns_waitcnt vmcnt(0)")
    P(f"v_xor_b32 {vt[0]}, {gi[0][3]}, {vTAG}")
    for m in range(1, 8):
        P(f"v_xor_b32 {vt[1]}, {gi[m][3]}, {vTAG}\nv_or_b32 {vt[0]}, {vt[0]}, {vt[1]}")
    P(f"v_cmp_ne_u32 vcc, 0, {vt[0]}\ns_cbranch_vccz {lgo}")
    P(f"s_add_u32 {sCNT}, {sCNT}, 1\ns_cmp_gt_u32 {sCNT}, {SPIN}\ns_cbranch_scc1 {lgo}")
    g1_loads()
    P(f"s_branch {lchk}\n{lgo}:")
    ks = V(4, name='ksum')
    for m in range(8):
        mf(ks, vIS, gi[m][0:2], m == 0, M16)
    P(f"v_add_f32 {vt[0]}, {gi[0][2]}, {gi[1][2]}\nv_add_f32 {vt[1]}, {gi[2][2]}, {gi[3][2]}")
    P(f"v_add_f32 {vt[2]}, {gi[4][2]}, {gi[5][2]}\nv_add_f32 {vt[3]}, {gi[6][2]}, {gi[7][2]}")
    P(f"""v_add_f32 {vt[0]}, {vt[0]}, {vt[1]}
    v_add_f32 {vt[2]}, {vt[2]}, {vt[3]}
    v_add_f32 {vt[0]}, {vt[0]}, {vt[2]}
    v_mov_b32 {vt[1]}, {vt[0]}
    v_permlane32_swap_b32 {vt[0]}, {vt[1]}
    v_add_f32 {vt[0]}, {vt[0]}, {vt[1]}
    v_mov_b32 {vt[1]}, {vt[0]}
    v_permlane16_swap_b32 {vt[0]}, {vt[1]}
    v_add_f32 {vt[0]}, {vt[0]}, {vt[1]}
    v_mov_b32_dpp {vt[1]}, {vt[0]} quad_perm:[0,2,0,2] row_mask:0xf bank_mask:0xf
    v_mov_b32_dpp {vt[2]}, {vt[0]} quad_perm:[1,3,1,3] row_mask:0xf bank_mask:0xf
    v_mov_b32 {gi[0][3]}, {vTAG}
    v_cvt_pk_bf16_f32 {gi[0][2]}, {vt[1]}, {vt[2]}
    v_cvt_pk_bf16_f32 {gi[0][0]}, {ks[0]}, {ks[1]}
    v_cvt_pk_bf16_f32 {gi[0][1]}, {ks[2]}, {ks[3]}
    s_lshl_b32 {sT[0]}, {sHQ}, 5
    s_add_u32 {sT[0]}, {sT[0]}, {sRB}
    s_lshl_b32 {sT[0]}, {sT[0]}, 8
    s_add_u32 {sT[0]}, {sT[0]}, {WS_OUTBOX}
    s_mov_b64 exec, 0xffff""")
    P.vmem_maybe(f"buffer_store_dwordx4 {gi[0]}, {vL16}, {srd['ws']}, {sT[0]} offen sc1")
    P(f"s_mov_b64 exec, -1\n{lskip}:")
    stamp('own')
    V.free(ks, gi[1:])
    S.free(sG1)

    vo1 = [V(1, name=f'vo1{j}') for j in range(7)]
    P(f"s_mov_b32 {sT[0]}, 4682")
    for j in range(7):
        P(f"""v_add_u32 {vt[0]}, {64 * j}, v0
        v_mul_u32_u24 {vt[1]}, {sT[0]}, {vt[0]}
        v_lshrrev_b32 {vt[1]}, 16, {vt[1]}
        v_lshlrev_b32 {vt[0]}, 4, {vt[0]}
        v_mul_u32_u24 {vt[1]}, {3584 - 224}, {vt[1]}""")
        if j & 3:
            P(f"v_add_u32 {vt[0]}, {vt[0]}, {vt[1]}\nv_subrev_u32 {vo1[j]}, {1024 * (j & 3)}, {vt[0]}")
        else:
            P(f"v_add_u32 {vo1[j]}, {vt[0]}, {vt[1]}")

    def dma_w1(rnd):
        sl = ((rnd + 1) & 3) * 4
        P(f"""s_add_u32 {sT[0]}, {sW}, {4 * rnd}
        s_mul_i32 {sT[0]}, {sT[0]}, {32 * 3584}
        s_mul_i32 {sT[1]}, {sIC}, 224
        s_add_u32 {sT[0]}, {sT[0]}, {sT[1]}
        s_mul_i32 {sT[1]}, {sW}, 7168
        s_add_u32 m0, {sT[1]}, {L_W1 + sl * 7168}""")
        for j in range(7):
            if j == 4:
                P(f"s_add_u32 m0, {sT[1]}, {L_W1 + sl * 7168 + 4096}")
            P.vmem(f"buffer_load_dwordx4 {vo1[j]}, {srd['w1']}, {sT[0]} offen offset:{1024 * (j & 3)} lds", ('w1', rnd))

    g2 = [V(4, name='g2p'), V(4, name='g2m')]
    xr = V(2, name='xrec')
    sG2, sXR = S(1, name='g2'), S(1, name='xr')
    vL8 = V(1, name='l8')
    P(f"""s_lshl_b32 {sG2}, {sHQ}, 2
    s_add_u32 {sG2}, {sG2}, {sW}
    s_lshl_b32 {sG2}, {sG2}, 11
    s_add_u32 {sG2}, {sG2}, {WS_OUTBOX}
    s_lshl_b32 {sXR}, {sRB128}, 7
    s_add_u32 {sXR}, {sXR}, {WS_XCC}
    v_lshlrev_b32 {vL8}, 3, {vN}""")

    def g2_loads(track):
        f = P.vmem if track else (lambda t, tag: P.vmem_maybe(t))
        for sg in range(2):
            f(f"buffer_load_dwordx4 {g2[sg]}, {vL16}, {srd['ws']}, {sG2} offen offset:{1024 * sg} sc1", 'g2')
        f(f"buffer_load_dwordx2 {xr}, {vL8}, {srd['ws']}, {sXR} offen sc1", 'g2')

    plan = cfg.get('w1_plan', {'own': [0], 'g2': [1], 'o': [2, 3]})
    for r in plan.get('own', []):
        dma_w1(r)

    def hook(i):
        if i == cfg.get('g2_hook', 1):
            g2_loads(True)
            for r in plan.get('g2', []):
                dma_w1(r)

    phq = [V(4, name=f'phq{u}') for u in range(4)]
    softmax(accQ, csQ, phq, hook)
    V.free(csQ, st, vPHI)
    stamp('phq')
    for j in range(4):
        P(f"v_xor_b32 {vTB[j]}, {32 * j}, {vTR0}\nv_add_u32 {vTB[j]}, {L_WO}, {vTB[j]}")
    V.free(vTR0)
    P.wait(vm=['wo', 'xres'])
    P("s_barrier")
    aWO = lambda s, j: aX.sub(s * 16 + j * 4, 4)
    xres = V(8, name='xres')
    P(f"""v_and_b32 {vt[0]}, 7, {vN}
    v_lshrrev_b32 {vt[1]}, 1, {vG}
    v_xor_b32 {vt[0]}, {vt[0]}, {vt[1]}
    v_lshlrev_b32 {vt[0]}, 4, {vt[0]}
    v_lshl_or_b32 {vt[0]}, {vN}, 7, {vt[0]}
    v_and_b32 {vt[1]}, 1, {vG}
    v_lshl_or_b32 {vt[0]}, {vt[1]}, 3, {vt[0]}
    v_add_u32 {vt[0]}, {sW2K}, {vt[0]}""")
    for j in range(4):
        if j:
            P(f"v_xor_b32 {vt[j]}, {32 * j}, {vt[0]}")
        P.dsop(f"ds_read_b64 {xres.sub(2 * j, 2)}, {vt[j]} offset:{L_XR}", 'xres')
    for s in range(16):
        for j in range(4):
            for hf in range(2):
                P.dsop(f"ds_read_b64_tr_b16 {aWO(s, j).sub(2 * hf, 2)}, {vTB[j]} offset:{s * 4096 + hf * 2048}", 'wo')
    stamp('wo')
    lchk, lgo = P.label('g2_chk'), P.label('g2_go')
    P.wait(vm='g2')
    P(f"s_mov_b32 {sCNT}, 0\n{lchk}:")
    P(f"""v_xor_b32 {vt[0]}, {g2[0][3]}, {vTAG}
    v_xor_b32 {vt[1]}, {g2[1][3]}, {vTAG}
    v_xor_b32 {vt[2]}, {xr[1]}, {vTAG}
    v_or3_b32 {vt[0]}, {vt[0]}, {vt[1]}, {vt[2]}
    v_cmp_ne_u32 vcc, 0, {vt[0]}
    s_cbranch_vccz {lgo}
    s_add_u32 {sCNT}, {sCNT}, 1
    s_cmp_gt_u32 {sCNT}, {SPIN}
    s_cbranch_scc1 {lgo}""")
    g2_loads(False)
    P(f"s_waitcnt vmcnt(0)\ns_branch {lchk}\n{lgo}:")
    stamp('g2')
    zA = V(4, name='zA')
    P(f"""v_cmp_ne_u32 vcc, {sFAST}, {xr[0]}
    v_mov_b32_dpp {zA[0]}, {g2[0][2]} quad_perm:[0,0,0,0] row_mask:0xf bank_mask:0xf
    v_mov_b32_dpp {zA[1]}, {g2[0][2]} quad_perm:[1,1,1,1] row_mask:0xf bank_mask:0xf
    v_mov_b32_dpp {zA[2]}, {g2[1][2]} quad_perm:[0,0,0,0] row_mask:0xf bank_mask:0xf
    v_mov_b32_dpp {zA[3]}, {g2[1][2]} quad_perm:[1,1,1,1] row_mask:0xf bank_mask:0xf
    v_mov_b32 {g2[0][2]}, {g2[1][0]}
    v_mov_b32 {g2[0][3]}, {g2[1][1]}
    s_cmp_eq_u64 vcc, 0
    s_cselect_b32 {sFAST}, {0 if FORCE_SLOW else 1}, 0""")
    num, den = accQ, [V(4) for u in range(4)]
    for u in range(4):
        mf(den[u], zA, phq[u], True)
    for u in range(4):
        mf(num[u], g2[0], phq[u], True)
    P(f"""s_lshl_b32 {sT[4]}, {sRB}, 16
    s_lshl_b32 {sT[0]}, {sHQ}, 11
    s_add_u32 {sT[4]}, {sT[4]}, {sT[0]}
    s_lshr_b32 {sT[0]}, {sW}, 1
    s_lshl_b32 {sT[0]}, {sT[0]}, 10
    s_add_u32 {sT[4]}, {sT[4]}, {sT[0]}
    s_and_b32 {sT[0]}, {sW}, 1
    s_lshl_b32 {sT[0]}, {sT[0]}, 3
    s_add_u32 {sT[4]}, {sT[4]}, {sT[0]}
    s_add_u32 {sT[4]}, {sT[4]}, {WS_O}""")
    for u in range(4):
        P(f"s_xor_b32 {sT[u]}, {sW}, {u}\ns_lshl_b32 {sT[u]}, {sT[u]}, 14\ns_add_u32 {sT[u]}, {sT[u]}, {sT[4]}")
    streams = []
    for u in range(4):
        streams.append([
            f"v_add_f32 {den[u][0]}, {f2u(1e-6)}, {den[u][0]}",
            f"v_rcp_f32 {den[u][0]}, {den[u][0]}",
            f"v_pk_mul_f32 {num[u][0:2]}, {num[u][0:2]}, {den[u][0:2]} {LO}",
            f"v_pk_mul_f32 {num[u][2:4]}, {num[u][2:4]}, {den[u][0:2]} {LO}",
            f"v_cvt_pk_bf16_f32 {den[u][2]}, {num[u][0]}, {num[u][1]}",
            f"v_cvt_pk_bf16_f32 {den[u][3]}, {num[u][2]}, {num[u][3]}"])
    for x in interleave(*streams):
        P(x)

    def stores(lines, plain_ok, tag):
        if not plain_ok:
            for t in lines:
                P.vmem(t + " sc1", tag) if t.startswith('buffer') else P(t)
            return
        l1, l2 = P.label('st_slow'), P.label('st_done')
        P(f"s_cmp_eq_u32 {sFAST}, 0\ns_cbranch_scc1 {l1}")
        for t in lines:
            P.vmem(t, tag) if t.startswith('buffer') else P(t)
        P(f"s_branch {l2}\n{l1}:")
        for t in lines:
            P(t + " sc1") if t.startswith('buffer') else P(t)
        P(f"{l2}:")

    stores([f"buffer_store_dwordx2 {den[u][2:4]}, {vL16}, {srd['ws']}, {sT[u]} offen" for u in range(4)], PLAIN_O, 'ost')
    stamp('ost')
    V.free(zA, g2, xr, phq, vL8, gi[0], vID, vIS)
    S.free(sG2, sXR)

    P(f"v_lshlrev_b32 {vL4}, 2, v0")

    def hop(base, sgrp, sidx, nflag, wait_tags, name, between=None):
        P(f"""s_lshl_b32 {sT[5]}, {sgrp}, 7
        s_add_u32 {sT[5]}, {sT[5]}, {base}
        s_lshl_b32 {sT[4]}, {sidx}, 2
        s_add_u32 {sT[4]}, {sT[4]}, {sT[5]}""")
        P.wait(vm=wait_tags, lg='all')
        P("s_barrier")
        stamp(name + '_dr')
        l0, l1 = P.label('fl_skip'), P.label('fl_slow')
        P(f"s_cmp_lg_u32 {sW}, 0\ns_cbranch_scc1 {l0}\ns_mov_b64 exec, 1\ns_cmp_eq_u32 {sFAST}, 0\ns_cbranch_scc1 {l1}")
        P.vmem_maybe(f"buffer_store_dword {vTAG}, {vL4}, {srd['ws']}, {sT[4]} offen")
        P(f"s_branch {l0}\n{l1}:")
        P.vmem_maybe(f"buffer_store_dword {vTAG}, {vL4}, {srd['ws']}, {sT[4]} offen sc1")
        P(f"{l0}:\ns_mov_b64 exec, -1")
        if between:
            between()
        lp, le = P.label('poll'), P.label('poll_e')
        P(f"s_mov_b64 exec, {(1 << nflag) - 1}\ns_mov_b32 {sCNT}, 0")
        P(f"buffer_load_dword {vPOLL[0]}, {vL4}, {srd['ws']}, {sT[5]} offen sc1\n{lp}:")
        for d in range(2):
            P(f"""buffer_load_dword {vPOLL[1 - d]}, {vL4}, {srd['ws']}, {sT[5]} offen sc1
            s_waitcnt vmcnt(1)
            v_cmp_ne_u32 vcc, {sTAG}, {vPOLL[d]}
            s_cbranch_vccz {le}""")
        P(f"s_add_u32 {sCNT}, {sCNT}, 1\ns_cmp_le_u32 {sCNT}, {SPIN}\ns_cbranch_scc1 {lp}\n{le}:\ns_mov_b64 exec, -1")
        P.vm = []
        stamp(name + '_fl')

    hop(WS_F2, sRB, sHQ, 8, 'ost', 'h2')
    V.free(den)
    if STOP <= 2:
        finish()
        return P, V, S, stamps

    of = [V(4, name=f'of{s}') for s in range(16)]
    P(f"""s_lshl_b32 {sT[4]}, {sRB}, 2
    s_add_u32 {sT[4]}, {sT[4]}, {sW}
    s_lshl_b32 {sT[4]}, {sT[4]}, 14
    s_add_u32 {sT[2]}, {sT[4]}, {WS_O}""")
    for s in range(16):
        if s and s % 4 == 0:
            P(f"s_add_u32 {sT[2]}, {sT[2]}, 4096")
        P.vmem(f"buffer_load_dwordx4 {of[s]}, {vL16}, {srd['ws']}, {sT[2]} offen offset:{1024 * (s & 3)} sc1", ('o', s))
    for r in plan.get('o', []):
        dma_w1(r)
    accB = accQ
    xf32 = V(16, name='xf32')
    for j in range(8):
        P(f"v_lshlrev_b32 {xf32[2 * j]}, 16, {xres[j]}\nv_and_b32 {xf32[2 * j + 1]}, 0xffff0000, {xres[j]}")
    for s in range(16):
        P.wait(vm=('o', s))
        for j in range(4):
            P(f"{M32} {accB[j]}, {aWO(s, j)}, {of[s]}, {xf32.sub(4 * j, 4) if s == 0 else accB[j]}")
    stamp('b1')
    V.free(of, xf32)
    hb = xres
    s1, s2 = V(4), V(4)
    P(f"""s_lshl_b32 {sT[0]}, {sHQ}, 11
    s_add_u32 {sT[0]}, {sT[0]}, {sT[4]}
    s_add_u32 {sT[0]}, {sT[0]}, {WS_H}
    s_lshr_b32 {sT[1]}, {sT[4]}, 4
    s_lshl_b32 {sT[2]}, {sHQ}, 7
    s_add_u32 {sT[1]}, {sT[1]}, {sT[2]}
    s_add_u32 {sT[1]}, {sT[1]}, {WS_STATS}
    v_lshrrev_b32 {vt[0]}, 1, {vG}
    v_lshlrev_b32 {vt[1]}, 2, {vN}
    v_lshl_or_b32 {vt[0]}, {vt[0]}, 6, {vt[1]}""")
    for j in range(4):
        P(f"v_cvt_pk_bf16_f32 {hb[2 * j]}, {accB[j][0]}, {accB[j][1]}\nv_cvt_pk_bf16_f32 {hb[2 * j + 1]}, {accB[j][2]}, {accB[j][3]}")
    hst = [f"buffer_store_dwordx4 {hb.sub(4 * k, 4)}, {vL16}, {srd['ws']}, {sT[0]} offen offset:{1024 * k}" for k in range(2)]
    stores(hst, PLAIN_H, 'hst')
    P(f"""v_pk_add_f32 {s1[0:2]}, {accB[0][0:2]}, {accB[0][2:4]}
    v_pk_add_f32 {s1[2:4]}, {accB[1][0:2]}, {accB[1][2:4]}
    v_pk_mul_f32 {s2[0:2]}, {accB[0][0:2]}, {accB[0][0:2]}
    v_pk_mul_f32 {s2[2:4]}, {accB[0][2:4]}, {accB[0][2:4]}
    v_pk_add_f32 {s1[0:2]}, {s1[0:2]}, {accB[2][0:2]}
    v_pk_add_f32 {s1[2:4]}, {s1[2:4]}, {accB[2][2:4]}""")
    for j in range(1, 4):
        P(f"v_pk_fma_f32 {s2[0:2]}, {accB[j][0:2]}, {accB[j][0:2]}, {s2[0:2]}\nv_pk_fma_f32 {s2[2:4]}, {accB[j][2:4]}, {accB[j][2:4]}, {s2[2:4]}")
    P(f"""v_pk_add_f32 {s1[0:2]}, {s1[0:2]}, {accB[3][0:2]}
    v_pk_add_f32 {s1[2:4]}, {s1[2:4]}, {accB[3][2:4]}
    v_pk_add_f32 {s2[0:2]}, {s2[0:2]}, {s2[2:4]}
    v_pk_add_f32 {s1[0:2]}, {s1[0:2]}, {s1[2:4]}
    v_add_f32 {s2[0]}, {s2[0]}, {s2[1]}
    v_add_f32 {s1[0]}, {s1[0]}, {s1[1]}
    v_permlane32_swap_b32 {s1[0]}, {s2[0]}
    v_add_f32 {s1[0]}, {s1[0]}, {s2[0]}
    v_mov_b32 {s1[1]}, {s1[0]}
    v_permlane16_swap_b32 {s1[0]}, {s1[1]}
    v_add_f32 {s1[0]}, {s1[0]}, {s1[1]}
    s_mov_b32 exec_lo, 0xffff
    s_mov_b32 exec_hi, 0xffff""")
    stores([f"buffer_store_dword {s1[0]}, {vt[0]}, {srd['ws']}, {sT[1]} offen"], PLAIN_H, 'hst')
    P("s_mov_b64 exec, -1")
    stamp('hst')

    aW2 = lambda e, j: aX.sub(e * 16 + j * 4, 4)
    sW2B, sSTG = S(1, name='w2b'), S(1, name='stg')
    P(f"""s_mul_i32 {sW2B}, {sW}, {448 * 1024}
    s_lshl_b32 {sT[2]}, {sHQ}, 7
    s_add_u32 {sW2B}, {sW2B}, {sT[2]}
    s_mul_i32 {sSTG}, {sW}, 12288""")
    R0 = [0, 32, 64, 112, 144, 176, 96]

    def dma_w2(e, ldsoff, sbase):
        pp, q = divmod(e, 7)
        r0 = 224 * pp + R0[q]
        P(f"s_add_u32 {sT[0]}, {sW2B}, {r0 * 1024}\ns_add_u32 m0, {sbase}, {ldsoff}")
        for m in range(4):
            if m == 2 and q == 6:
                P(f"s_add_u32 {sT[0]}, {sW2B}, {(224 * pp + 208 - 16) * 1024}")
            P.vmem(f"buffer_load_dwordx4 {voB[m]}, {srd['w2']}, {sT[0]} offen offset:{1024 * m} lds", ('w2', e))

    def rd_w2(e, ldsoff):
        for j in range(4):
            for hf in range(2):
                P.dsop(f"ds_read_b64_tr_b16 {aW2(e, j).sub(2 * hf, 2)}, {vTB[j]} offset:{ldsoff + hf * 2048}", ('w2', e))

    hres = V(8, name='hres')

    def between3():
        P(f"""v_mul_u32_u24 {vt[0]}, 144, {vN}
        v_lshl_add_u32 {vt[0]}, {vG}, 3, {vt[0]}
        v_add_u32 {vt[0]}, {sSTG}, {vt[0]}
        v_mul_u32_u24 {vt[1]}, 144, {vPP}
        v_and_b32 {vt[2]}, 7, v0
        v_lshl_add_u32 {vt[1]}, {vt[2]}, 4, {vt[1]}
        v_add_u32 {vt[1]}, {sSTG}, {vt[1]}""")
        for j in range(4):
            P.dsop(f"ds_write_b64 {vt[0]}, {hb.sub(2 * j, 2)} offset:{32 * j}", 'hr')
        P.wait(lg='hr')
        for m in range(2):
            P.dsop(f"ds_read_b128 {hres.sub(4 * m, 4)}, {vt[1]} offset:{1152 * m}", 'hr')
        for j in range(4):
            P(f"v_subrev_u32 {vTB[j]}, {L_WO}, {vTB[j]}\nv_add_u32 {vTB[j]}, {sSTG}, {vTB[j]}")
        P(f"v_lshrrev_b32 {vt[2]}, 1, {vN}\nv_mov_b32 {vt[3]}, 0")
        for j in range(7):
            P(f"v_cmp_eq_u32 vcc, {j}, {vt[2]}\nv_cndmask_b32 {vt[4]}, {vt[3]}, {vONE[0]}, vcc")
            for i in range(4):
                P(f"v_accvgpr_write_b32 a{224 + 4 * j + i}, {vt[4]}")
        P.wait(lg='hr')

    hop(WS_F3, sRB128, sIC, 16, ['hst'] + [('w1', r) for r in range(4)], 'h3', between3)
    V.free(s1, s2, accB, hb, vo1, vONE)
    if STOP <= 3:
        finish()
        return P, V, S, stamps

    hf_ = [[V(4, name=f'h{s}{t}') for t in range(2)] for s in range(16)]
    acc = [[V(4, name=f'c{j}{t}') for t in range(2)] for j in range(7)]
    cs1 = V(4, name='cs1')
    RING = 8
    ring = [V(4, name=f'r{i}') for i in range(RING)]
    assert hf_[0][1].base == hf_[0][0].base + 4
    sraw = Reg('v', hf_[0][0].base, 8)
    braw = hf_[1][0][0:2]
    P(f"""s_lshl_b32 {sT[4]}, {sRB128}, 2
    s_add_u32 {sT[4]}, {sT[4]}, {sW}
    s_lshl_b32 {sT[2]}, {sT[4]}, 15
    s_add_u32 {sT[2]}, {sT[2]}, {WS_H}
    s_add_u32 {sT[3]}, {sT[2]}, 16384""")
    for s in range(16):
        if s and s % 4 == 0:
            P(f"s_add_u32 {sT[2]}, {sT[2]}, 4096\ns_add_u32 {sT[3]}, {sT[3]}, 4096")
        for t in range(2):
            P.vmem(f"buffer_load_dwordx4 {hf_[s][t]}, {vL16}, {srd['ws']}, {sT[2 + t]} offen offset:{1024 * (s & 3)} sc1", ('h', s))
    def c_small_loads():
        P(f"""s_lshl_b32 {sT[2]}, {sT[4]}, 11
        s_add_u32 {sT[2]}, {sT[2]}, {WS_STATS}
        v_and_b32 {vt[0]}, 1, {vG}
        v_lshrrev_b32 {vt[1]}, 1, {vG}
        v_lshl_or_b32 {vt[0]}, {vt[0]}, 1, {vt[1]}
        v_lshlrev_b32 {vt[1]}, 2, {vN}
        v_lshl_or_b32 {vt[0]}, {vt[0]}, 6, {vt[1]}
        v_lshrrev_b32 {vt[1]}, 1, {vN}
        v_min_u32 {vt[1]}, 6, {vt[1]}
        v_lshlrev_b32 {vt[1]}, 5, {vt[1]}
        v_lshl_or_b32 {vt[1]}, {vG}, 3, {vt[1]}
        s_mul_i32 {sT[3]}, {sIC}, 224""")
        for t in range(2):
            for m in range(4):
                P.vmem(f"buffer_load_dword {sraw[4 * t + m]}, {vt[0]}, {srd['ws']}, {sT[2]} offen offset:{1024 * t + 256 * m} sc1", 'stat')
        P.vmem(f"buffer_load_dwordx2 {braw}, {vt[1]}, {srd['b1']}, {sT[3]} offen", 'stat')
        for e in range(3):
            dma_w2(e, 4096 * e, sSTG)

    v1A = [V(1, name='w1a0'), V(1, name='w1a1')]
    P(f"""v_lshrrev_b32 {vt[0]}, 2, v0
    v_mul_u32_u24 {vt[0]}, 224, {vt[0]}
    v_and_b32 {vt[1]}, 3, v0
    v_lshl_add_u32 {vt[0]}, {vt[1]}, 3, {vt[0]}
    v_add_u32 {v1A[0]}, {L_W1}, {vt[0]}
    v_add_u32 {v1A[1]}, {L_W1 + 57344}, {vt[0]}""")

    def rd_w1(f):
        s, j = divmod(f, 7)
        sl = (s + 4) % 16
        va, off = (v1A[0], sl * 7168) if sl < 8 else (v1A[1], (sl - 8) * 7168)
        for hf in range(2):
            P.dsop(f"ds_read_b64_tr_b16 {ring[f % RING].sub(2 * hf, 2)}, {va} offset:{off + hf * 3584 + 32 * j}", ('w1f', f))

    for i in range(4):
        P(f"v_mov_b32 {cs1[i]}, 0")
    for f in range(RING - 1):
        rd_w1(f)
    W2AT = cfg.get('w2_at', 14)
    W2G = cfg.get('w2_gelu', 3)
    staged = [0, 1, 2]

    def ring_turn(new_steps):
        P.wait(vm=('w2', staged[-1]))
        for i, e in enumerate(staged):
            rd_w2(e, 4096 * i)
        P.wait(lg=('w2', staged[-1]))
        for i, e in enumerate(new_steps):
            dma_w2(e, 4096 * i, sSTG)
        staged[:] = new_steps

    for s in range(16):
        P.wait(vm=('h', s))
        for j in range(7):
            f = 7 * s + j
            if f + RING - 1 < 112:
                rd_w1(f + RING - 1)
            P.wait(lg=('w1f', f))
            for t in range(2):
                mf(acc[j][t], ring[f % RING], hf_[s][t], s == 0)
            lab = P.label('cs')
            P(f"s_cmp_lg_u32 {sW}, {s & 3}\ns_cbranch_scc1 {lab}")
            mf(cs1, ring[f % RING], Reg('a', 224 + 4 * j, 4), False)
            P(f"{lab}:")
        if s == 1:
            c_small_loads()
        if s == W2AT:
            ring_turn([3, 4, 5])
    stamp('c1')
    V.free(ring, v1A)
    LCS = L_W1
    P(f"s_lshl_b32 {sT[0]}, {sW}, 10\nv_add_u32 {vt[0]}, {sT[0]}, {vL16}")
    P.wait(lg='all')
    P("s_barrier")
    P.dsop(f"ds_write_b128 {vt[0]}, {cs1} offset:{LCS}", 'cs')
    sST2 = S(1, name='st2')
    rest = list(range(6, 12))
    P(f"s_mul_i32 {sST2}, {sW}, {len(rest) * 4096}\ns_add_u32 {sST2}, {sST2}, {L_W1 + 4096}")
    assert L_W1 + 4096 + 4 * len(rest) * 4096 <= LDS_BYTES
    P.wait(vm='stat')
    stc = [V(2, name='stc0'), V(2, name='stc1')]
    streams = []
    for t in range(2):
        a = sraw.sub(4 * t, 4)
        streams.append([
            f"v_pk_add_f32 {a[0:2]}, {a[0:2]}, {a[2:4]}",
            f"v_add_f32 {a[0]}, {a[0]}, {a[1]}",
            f"v_mov_b32 {a[1]}, {a[0]}",
            f"v_permlane16_swap_b32 {a[0]}, {a[1]}",
            f"v_add_f32 {a[0]}, {a[0]}, {a[1]}",
            f"v_mul_f32 {a[0]}, {f2u(1 / 512)}, {a[0]}",
            f"v_mov_b32 {a[1]}, {a[0]}",
            f"v_permlane32_swap_b32 {a[0]}, {a[1]}",
            f"v_fma_f32 {a[1]}, -{a[0]}, {a[0]}, {a[1]}",
            f"v_max_f32 {a[1]}, 0, {a[1]}",
            f"v_add_f32 {a[1]}, {f2u(1e-5)}, {a[1]}",
            f"v_rsq_f32 {stc[t][0]}, {a[1]}",
            f"v_mul_f32 {stc[t][1]}, -{a[0]}, {stc[t][0]}"])
    for x in interleave(*streams):
        P(x)
    b1f = V(4, name='b1f')
    P(f"""v_lshlrev_b32 {b1f[0]}, 16, {braw[0]}
    v_and_b32 {b1f[1]}, 0xffff0000, {braw[0]}
    v_lshlrev_b32 {b1f[2]}, 16, {braw[1]}
    v_and_b32 {b1f[3]}, 0xffff0000, {braw[1]}""")
    P.wait(lg='cs')
    P("s_barrier")
    cp = [hf_[9][0], hf_[9][1], hf_[11][0], hf_[11][1]]
    for k in range(4):
        P.dsop(f"ds_read_b128 {cp[k]}, {vL16} offset:{LCS + 1024 * k}", 'cs')
    late = cfg.get('w2_late', False)
    if not late:
        for i, e in enumerate(rest):
            dma_w2(e, 4096 * i, sST2)
    P.wait(lg='cs')
    for h in range(2):
        P(f"v_pk_add_f32 {cp[0].sub(2 * h, 2)}, {cp[0].sub(2 * h, 2)}, {cp[1].sub(2 * h, 2)}")
        P(f"v_pk_add_f32 {cp[2].sub(2 * h, 2)}, {cp[2].sub(2 * h, 2)}, {cp[3].sub(2 * h, 2)}")
    for h in range(2):
        P(f"v_pk_add_f32 {cs1.sub(2 * h, 2)}, {cp[0].sub(2 * h, 2)}, {cp[2].sub(2 * h, 2)}")
    c1 = -2.0 * math.log2(math.e) * math.sqrt(2.0 / math.pi)
    P(f"s_mov_b32 {sK[0]}, {f2u(c1 * 0.044715)}\ns_mov_b32 {sK[1]}, {f2u(c1)}")
    P(f"""s_lshl_b32 {sT[2]}, {sRB128}, 4
    s_add_u32 {sT[2]}, {sT[2]}, {sIC}
    s_lshl_b32 {sT[2]}, {sT[2]}, 2
    s_add_u32 {sT[2]}, {sT[2]}, {sW}
    s_mul_i32 {sT[2]}, {sT[2]}, 7168
    s_add_u32 {sT[2]}, {sT[2]}, {WS_H1}
    s_add_u32 {sT[3]}, {sT[2]}, 4096""")
    ex = [[hf_[2 + 2 * b][0], hf_[2 + 2 * b][1]] for b in range(2)]
    tm = [[hf_[6 + t][0], hf_[6 + t][1]] for t in range(2)]
    ob = [[hf_[8 + 2 * p][t] for t in range(2)] for p in range(4)]
    for j in range(7):
        ce, be = ex[j & 1]
        for r in range(4):
            P(f"v_mov_b32_dpp {ce[r]}, {cs1[r]} row_newbcast:{2 * j} row_mask:0xf bank_mask:0xf")
            P(f"v_mov_b32_dpp {be[r]}, {b1f[r]} row_newbcast:{2 * j} row_mask:0xf bank_mask:0xf")
        streams = []
        for t in range(2):
            for h in range(2):
                x = acc[j][t].sub(2 * h, 2)
                u_, e_ = tm[t][0].sub(2 * h, 2), tm[t][1].sub(2 * h, 2)
                if j < 6:
                    dst = ob[j >> 1][t][2 * (j & 1) + h]
                else:
                    dst = ob[3][0][2 * t + h]
                streams.append([
                    f"v_pk_fma_f32 {u_}, {ce.sub(2 * h, 2)}, {stc[t]}, {be.sub(2 * h, 2)} op_sel:[0,1,0] op_sel_hi:[1,1,1]",
                    f"v_pk_fma_f32 {x}, {x}, {stc[t]}, {u_} op_sel:[0,0,0] op_sel_hi:[1,0,1]",
                    f"v_pk_mul_f32 {u_}, {x}, {x}",
                    f"v_pk_fma_f32 {u_}, {u_}, {sK}, {sK} op_sel:[0,0,1] op_sel_hi:[1,0,1]",
                    f"v_pk_mul_f32 {e_}, {x}, {u_}",
                    f"v_exp_f32 {e_[0]}, {e_[0]}",
                    f"v_exp_f32 {e_[1]}, {e_[1]}",
                    f"v_pk_add_f32 {e_}, {e_}, 1.0 op_sel_hi:[1,0]",
                    f"v_rcp_f32 {e_[0]}, {e_[0]}",
                    f"v_rcp_f32 {e_[1]}, {e_[1]}",
                    f"v_pk_mul_f32 {x}, {x}, {e_}",
                    f"v_cvt_pk_bf16_f32 {dst}, {x[0]}, {x[1]}"])
        for x in interleave(*streams):
            P(x)
        if j == W2G:
            ring_turn([12, 13])
        if j & 1:
            for t in range(2):
                b = 2 * (j >> 1) + t
                P.vmem(f"buffer_store_dwordx4 {ob[j >> 1][t]}, {vL16}, {srd['ws']}, {sT[2 + (b >> 2)]} offen offset:{1024 * (b & 3)} sc1", 'h1st')
        if j == 6:
            P.vmem(f"buffer_store_dwordx4 {ob[3][0]}, {vL16}, {srd['ws']}, {sT[3]} offen offset:2048 sc1", 'h1st')
    stamp('gelu')
    V.free(acc, cs1, stc, b1f)

    rb = V(16, name='rb')
    b2raw = V(4, name='b2raw')

    def between4():
        if late:
            for i, e in enumerate(rest):
                dma_w2(e, 4096 * i, sST2)
        P(f"v_and_b32 {vt[0]}, 7, v0\nv_lshlrev_b32 {vt[0]}, 4, {vt[0]}\ns_lshl_b32 {sT[0]}, {sHQ}, 7")
        P.vmem(f"buffer_load_dwordx4 {b2raw}, {vt[0]}, {srd['b2']}, {sT[0]} offen", 'b2')
        P.wait(vm=[('w2', e) for e in range(14)])
        for i, e in enumerate(staged):
            rd_w2(e, 4096 * i)
        for j in range(4):
            P(f"v_subrev_u32 {vTB[j]}, {sSTG}, {vTB[j]}\nv_add_u32 {vTB[j]}, {sST2}, {vTB[j]}")
        for i, e in enumerate(rest):
            rd_w2(e, 4096 * i)
        P.wait(vm='b2')
        for m in range(2):
            for k in range(4):
                P(f"""v_lshlrev_b32 {vt[0]}, 16, {hres[4 * m + k]}
                v_and_b32 {vt[1]}, 0xffff0000, {hres[4 * m + k]}
                v_lshlrev_b32 {vt[2]}, 16, {b2raw[k]}
                v_and_b32 {vt[3]}, 0xffff0000, {b2raw[k]}
                v_add_f32 {rb[8 * m + 2 * k]}, {vt[0]}, {vt[2]}
                v_add_f32 {rb[8 * m + 2 * k + 1]}, {vt[1]}, {vt[3]}""")
        P.wait(lg='all')

    hop(WS_F4, sRB128, sIC, 16, 'h1st', 'h4', between4)
    V.free(hf_, hres, b2raw, voB, vTB)
    if STOP <= 4:
        finish()
        return P, V, S, stamps

    DR = 8
    hq_ = [[V(4, name=f'd{e}{t}') for t in range(4)] for e in range(DR)]
    accD = [[V(4, name=f'D{t}{j}') for j in range(4)] for t in range(4)]
    sD = S(1, name='dbase')
    P(f"""s_lshl_b32 {sD}, {sRB128}, 4
    s_lshl_b32 {sT[0]}, {sW}, 2
    s_add_u32 {sD}, {sD}, {sT[0]}
    s_lshl_b32 {sD}, {sD}, 2
    s_and_b32 {sT[0]}, {sRB}, 1
    s_lshl_b32 {sT[0]}, {sT[0]}, 1
    s_add_u32 {sD}, {sD}, {sT[0]}
    s_mul_i32 {sD}, {sD}, 7168
    s_add_u32 {sD}, {sD}, {WS_H1}""")

    def ld_d(e):
        pp, q = divmod(e, 7)
        for tp_ in range(2):
            if q < 6:
                off = (2 * pp + q // 3) * 28672 + tp_ * 7168 + (q % 3) * 2048
                P(f"s_add_u32 {sT[0]}, {sD}, {off}")
                for tt in range(2):
                    P.vmem(f"buffer_load_dwordx4 {hq_[e % DR][2 * tp_ + tt]}, {vL16}, {srd['ws']}, {sT[0]} offen offset:{1024 * tt} sc1", ('d', e))
            else:
                for k in range(2):
                    off = (2 * pp + k) * 28672 + tp_ * 7168 + 6144
                    P(f"s_add_u32 {sT[0]}, {sD}, {off}")
                    P.vmem(f"buffer_load_dwordx4 {hq_[e % DR][2 * tp_ + k]}, {vL16}, {srd['ws']}, {sT[0]} offen sc1", ('d', e))

    for e in range(DR):
        ld_d(e)
    for e in range(14):
        P.wait(vm=('d', e))
        fr = hq_[e % DR]
        if e % 7 == 6:
            for tp_ in range(2):
                P(f"v_swap_b32 {fr[2 * tp_][2]}, {fr[2 * tp_ + 1][0]}\nv_swap_b32 {fr[2 * tp_][3]}, {fr[2 * tp_ + 1][1]}")
        for t in range(4):
            for j in range(4):
                mf(accD[t][j], aW2(e, j), fr[t], e == 0)
        if e + DR < 14:
            ld_d(e + DR)
    stamp('d1')
    P(f"""s_barrier
    v_mul_u32_u24 {vt[0]}, 272, {vN}
    v_lshl_add_u32 {vt[0]}, {vG}, 4, {vt[0]}
    s_mul_i32 {sT[0]}, {sW}, 4352
    v_add_u32 {vt[0]}, {sT[0]}, {vt[0]}
    v_mul_u32_u24 {vt[1]}, 272, {vPP}
    v_and_b32 {vt[2]}, 7, v0
    v_lshl_add_u32 {vt[1]}, {vt[2]}, 5, {vt[1]}
    s_mul_i32 {sT[0]}, {sW}, {4 * 4352}
    v_add_u32 {vt[1]}, {sT[0]}, {vt[1]}
    v_lshlrev_b32 {vt[2]}, 4, {vt[2]}
    v_lshl_or_b32 {vt[2]}, {vPP}, 10, {vt[2]}""")
    for t in range(4):
        for j in range(4):
            P.dsop(f"ds_write_b128 {vt[0]}, {accD[t][j]} offset:{t * 4 * 4352 + 64 * j}", 'red')
    P(f"""s_lshl_b32 {sT[0]}, {sHQ}, 7
    s_add_u32 {sT[0]}, {sT[0]}, {sXB}
    s_add_u32 {sT[1]}, {sT[0]}, 8192""")
    P.wait(lg='all')
    P("s_barrier")
    for m in range(2):
        for k in range(4):
            for h in range(2):
                P.dsop(f"ds_read_b128 {hq_[2 * m + (k >> 1)][2 * (k & 1) + h]}, {vt[1]} offset:{k * 4352 + m * 2176 + 16 * h}", ('red', m, k))
    for m in range(2):
        for k in range(4):
            P.wait(lg=('red', m, k))
            for h in range(2):
                src = hq_[2 * m + (k >> 1)][2 * (k & 1) + h]
                for i in range(2):
                    d = rb.sub(8 * m + 4 * h + 2 * i, 2)
                    P(f"v_pk_add_f32 {d}, {d}, {src.sub(2 * i, 2)}")
        o = accD[0][m]
        for k in range(4):
            P(f"v_cvt_pk_bf16_f32 {o[k]}, {rb[8 * m + 2 * k]}, {rb[8 * m + 2 * k + 1]}")
        P.vmem(f"buffer_store_dwordx4 {o}, {vt[2]}, {srd['out']}, {sT[m]} offen {OUT_SC}", 'out')
    lab = P.label('ep')
    P(f"s_or_b32 {sT[2]}, s2, {sW}\ns_cmp_lg_u32 {sT[2]}, 0\ns_cbranch_scc1 {lab}\ns_mov_b64 exec, 1")
    P.vmem_maybe(f"buffer_store_dword {vTAG}, {vL4}, {srd['ws']}, 0 offen offset:{WS_EPOCH} sc1")
    P(f"s_mov_b64 exec, -1\n{lab}:")
    finish()
    return P, V, S, stamps


HEADER = """; Fused block: preLN + hedgehog linear attention + preLN + GELU MLP, one persistent launch.
; @launch grid=(256,1,1) block=(256,1,1) lds={lds}
.amdgcn_target "amdgcn-amd-amdhsa--gfx950"
.text
.globl {name}
.p2align 8
.type {name},@function
{name}:
"""
FOOTER = """.section .rodata,"a"
.p2align 6
.amdhsa_kernel {name}
  .amdhsa_next_free_vgpr 512
  .amdhsa_next_free_sgpr 102
  .amdhsa_accum_offset 256
  .amdhsa_group_segment_fixed_size 0
  .amdhsa_kernarg_size 96
  .amdhsa_user_sgpr_count 2
  .amdhsa_user_sgpr_kernarg_segment_ptr 1
  .amdhsa_system_sgpr_workgroup_id_x 1
.end_amdhsa_kernel
"""


def build(cfg, path):
    P, V, S, stamps = gen(cfg)
    nops = P.pad()
    txt = HEADER.format(name=NAME, lds=LDS_BYTES) + P.text() + FOOTER.format(name=NAME)
    open(path, 'w').write(txt)
    n = sum(1 for x in P.ins if x.real)
    print(f"{path}: {n} instr, {nops} pad states, vgpr high {V.high}, sgpr high {S.high}, stamps {[s[0] for s in stamps]}", file=sys.stderr)
    return [s[0] for s in stamps]


if __name__ == '__main__':
    import json
    cfg = json.loads(sys.argv[2]) if len(sys.argv) > 2 else {}
    build(cfg, sys.argv[1])
```

```python
import re

TRANS = ('v_exp_f32', 'v_log_f32', 'v_rcp_f32', 'v_rsq_f32', 'v_sqrt_f32', 'v_sin_f32', 'v_cos_f32')


def R(kind, base, n=1):
    return f"{kind}{base}" if n == 1 else f"{kind}[{base}:{base + n - 1}]"


class Reg:
    def __init__(self, kind, base, n):
        self.kind, self.base, self.n = kind, base, n

    def __str__(self):
        return R(self.kind, self.base, self.n)

    __repr__ = __str__

    def __format__(self, spec):
        return str(self)

    def __getitem__(self, i):
        if isinstance(i, slice):
            a = i.start or 0
            b = self.n if i.stop is None else i.stop
            assert 0 <= a < b <= self.n, (self, i)
            return Reg(self.kind, self.base + a, b - a)
        assert 0 <= i < self.n, (self, i)
        return Reg(self.kind, self.base + i, 1)

    def sub(self, a, n):
        return self[a:a + n]


class Alloc:
    def __init__(self, kind, lo, hi):
        self.kind, self.lo, self.hi = kind, lo, hi
        self.used = {}
        self.high = lo

    def __call__(self, n=1, align=None, name=''):
        align = align or (1 if n == 1 else (2 if n == 2 else 4))
        if n <= 2 and self.kind == 'v':
            b = (self.hi - n) // align * align
            while b >= self.lo:
                if all((b + i) not in self.used for i in range(n)):
                    for i in range(n):
                        self.used[b + i] = name
                    self.high = max(self.high, b + n)
                    return Reg(self.kind, b, n)
                b -= align
            raise RuntimeError(f"out of {self.kind} regs for {name} n={n}; used={len(self.used)}")
        b = (self.lo + align - 1) // align * align
        while b + n <= self.hi:
            if all((b + i) not in self.used for i in range(n)):
                for i in range(n):
                    self.used[b + i] = name
                self.high = max(self.high, b + n)
                return Reg(self.kind, b, n)
            b += align
        raise RuntimeError(f"out of {self.kind} regs for {name} n={n}; used={len(self.used)}")

    def at(self, b, n, name=''):
        for i in range(n):
            assert (b + i) not in self.used, (self.kind, b + i, self.used[b + i], name)
            self.used[b + i] = name
        self.high = max(self.high, b + n)
        return Reg(self.kind, b, n)

    def free(self, *regs):
        for r in regs:
            if isinstance(r, (list, tuple)):
                self.free(*r)
                continue
            for i in range(r.n):
                del self.used[r.base + i]


_REG = re.compile(r'^(-?)(\|?|abs\()?([vas])(\d+|\[(\d+):(\d+)\])\)?\|?$')


def regs_of(tok):
    tok = tok.strip()
    if tok in ('vcc', 'exec', 'm0', 'scc'):
        return {(tok, 0)}
    if tok in ('vcc_lo', 'vcc_hi'):
        return {('vcc', 0)}
    if tok in ('exec_lo', 'exec_hi'):
        return {('exec', 0)}
    m = _REG.match(tok)
    if not m:
        return set()
    k = m.group(3)
    if m.group(5) is not None:
        return {(k, i) for i in range(int(m.group(5)), int(m.group(6)) + 1)}
    return {(k, int(m.group(4)))}


def split_ops(s):
    out, depth, cur = [], 0, ''
    for ch in s:
        if ch in '[(':
            depth += 1
        if ch in '])':
            depth -= 1
        if ch == ',' and depth == 0:
            out.append(cur.strip())
            cur = ''
        else:
            cur += ch
    if cur.strip():
        out.append(cur.strip())
    return out


class Ins:
    def __init__(self, text):
        self.text = text
        t = text.split(';')[0].strip()
        self.label = None
        self.op = ''
        self.defs, self.uses = set(), set()
        self.A = self.B = self.C = set()
        self.data = set()
        self.target = None
        self.ws = 1
        self.valu = self.mfma = self.salu = self.vmem = self.ds = self.dpp = self.trans = self.lds_dma = False
        self.mods = ''
        if not t:
            self.ws = 0
            return
        if t.endswith(':'):
            self.label = t[:-1]
            self.ws = 0
            return
        if t.startswith('.'):
            self.op = t
            self.ws = 0
            return
        parts = t.split(None, 1)
        op = parts[0]
        self.op = op
        rest = parts[1] if len(parts) > 1 else ''
        ops = split_ops(rest)
        mods = ''
        if ops:
            lp = ops[-1].split(None, 1)
            if len(lp) > 1:
                ops[-1], mods = lp[0], lp[1]
        self.mods = mods
        rs = [regs_of(o) for o in ops]
        U = lambda l: set().union(*l) if l else set()
        self.valu = op.startswith('v_') and not op.startswith('v_mfma')
        self.mfma = op.startswith('v_mfma')
        self.salu = op.startswith('s_')
        self.vmem = op.startswith(('buffer_', 'global_'))
        self.ds = op.startswith('ds_')
        self.dpp = '_dpp' in op or 'row_' in mods or 'quad_perm' in mods
        self.trans = any(op.startswith(x) for x in TRANS)
        self.lds_dma = self.vmem and re.search(r'\blds\b', mods) is not None
        if op == 's_nop':
            self.ws = int(ops[0], 0) + 1
        elif op.startswith(('s_branch', 's_cbranch')):
            self.target = ops[0]
            if 'vcc' in op:
                self.uses = {('vcc', 0)}
            elif 'scc' in op:
                self.uses = {('scc', 0)}
        elif self.mfma:
            self.defs = rs[0]
            self.A, self.B, self.C = rs[1], rs[2], rs[3]
            self.uses = self.A | self.B | self.C
        elif op.startswith('v_cmp'):
            self.defs = rs[0]
            self.uses = U(rs[1:])
        elif op.startswith(('v_swap', 'v_permlane')):
            self.defs = U(rs[:2])
            self.uses = U(rs[:2])
        elif op.startswith(('v_fmac', 'v_dot2c', 'v_pk_fmac')):
            self.defs = rs[0]
            self.uses = U(rs)
        elif op.startswith(('v_add_co', 'v_addc_co', 'v_sub_co')):
            self.defs = rs[0] | rs[1]
            self.uses = U(rs[2:])
        elif self.valu:
            self.defs = rs[0]
            self.uses = U(rs[1:])
            if self.dpp:
                self.uses |= rs[0] if 'bound_ctrl' not in mods and False else set()
        elif op.startswith('ds_read'):
            self.defs = rs[0]
            self.uses = U(rs[1:])
        elif op.startswith(('ds_write', 'ds_add')):
            self.uses = U(rs)
        elif op.startswith(('buffer_load', 'global_load')):
            if self.lds_dma:
                self.uses = U(rs) | {('m0', 0)}
            else:
                self.defs = rs[0]
                self.uses = U(rs[1:])
        elif op.startswith(('buffer_store', 'buffer_atomic')):
            self.uses = U(rs)
            self.data = rs[0]
        elif op.startswith('global_store'):
            self.uses = U(rs)
            self.data = rs[1]
        elif op.startswith(('s_cmp', 's_bitcmp')):
            self.uses = U(rs)
            self.defs = {('scc', 0)}
        elif op.startswith(('s_waitcnt', 's_barrier', 's_endpgm', 's_sleep', 's_setprio')):
            pass
        elif self.salu:
            self.defs = rs[0] if rs else set()
            self.uses = U(rs[1:])
        else:
            raise RuntimeError("unparsed: " + text)

    @property
    def real(self):
        return self.ws > 0


def need(p, c):
    n = 0
    if not p.real or not c.real or not p.op or not c.op:
        return 0
    vg = lambda s: {r for r in s if r[0] in 'va' and r[0] != 'vcc'}
    sg = lambda s: {r for r in s if r[0] in ('s', 'vcc')}
    if p.op == 's_nop' or c.op == 's_nop':
        return 0
    pv = getattr(p, 'valu', False)
    cv = getattr(c, 'valu', False)
    if pv:
        d = vg(p.defs)
        if c.mfma and d & c.uses:
            n = max(n, 2)
        if cv and d & c.uses:
            if c.dpp or c.op.startswith('v_permlane'):
                n = max(n, 2)
            if c.op.startswith(('v_readlane', 'v_readfirstlane')):
                n = max(n, 1)
            if p.trans and not c.trans:
                n = max(n, 1)
            if 'sdwa' in p.op and 'dst_sel:DWORD' not in p.mods:
                n = max(n, 1)
        s = sg(p.defs)
        if s:
            if cv and s & (c.uses | ({('vcc', 0)} if c.op.startswith(('v_cndmask_b32', 'v_addc')) else set())):
                n = max(n, 4 if c.op.startswith(('v_readlane', 'v_writelane')) else 2)
            if c.vmem and s & c.uses:
                n = max(n, 5)
    if p.mfma:
        passes = 8 if '32x32' in p.op else 4
        d = p.defs
        if c.mfma:
            if d & (c.A | c.B):
                n = max(n, passes + 4)
            if d & c.C and d != c.C:
                n = max(n, passes + 2)
            if d & c.defs and not (d == c.defs):
                n = max(n, passes + 2)
            if d == c.defs and c.C != d:
                n = max(n, passes + 2)
        elif (cv or c.vmem or c.ds) and d & (c.uses | c.defs):
            n = max(n, passes + 4)
        if cv and p.C & c.defs:
            n = max(n, passes - 1)
    if p.salu and ('m0', 0) in p.defs and getattr(c, 'lds_dma', False):
        n = max(n, 1)
    if p.vmem and p.data and len(p.data) >= 3 and p.data & c.defs:
        n = max(n, 2)
    return n


class Prog:
    def __init__(self):
        self.ins = []
        self.vm = []
        self.lg = []
        self.nlab = 0
        self.seen = set()
        self.count = {}
        self.expect = {}
        self.streams = []
        self.busy = False
        self.hold = 0

    def __call__(self, text):
        for line in text.split('\n'):
            if line.strip():
                x = Ins('  ' + line.strip() if not line.strip().endswith(':') else line.strip())
                self.ins.append(x)
                self._tick(x)

    def _tick(self, x):
        if self.busy or self.hold or not x.real:
            return
        c = 16 if x.mfma else (8 if (x.trans or x.op.startswith('v_permlane')) else 4)
        for st in self.streams:
            st['acc'] += c
            if st['acc'] >= st['iv'] and st['items'] and not x.op.startswith('s_cmp'):
                st['acc'] -= st['iv']
                self.busy = True
                st['items'].pop(0)()
                self.busy = False

    def pace(self, items, iv, first=None):
        st = dict(items=items, iv=iv, acc=(iv - first) if first is not None else 0)
        self.streams.append(st)
        return st

    def unpace(self, st, flush=True):
        self.streams.remove(st)
        if flush:
            while st['items']:
                st['items'].pop(0)()

    class _Hold:
        def __init__(self, p):
            self.p = p

        def __enter__(self):
            self.p.hold += 1

        def __exit__(self, *a):
            self.p.hold -= 1

    def nopace(self):
        return Prog._Hold(self)

    def label(self, base):
        self.nlab += 1
        return f"L_{base}_{self.nlab}"

    def vmem(self, text, tag=None, of=None):
        self.vm.append(tag)
        self.seen.add(tag)
        self.count[tag] = self.count.get(tag, 0) + 1
        if of:
            self.expect[tag] = of
        self(text)

    def vmem_maybe(self, text):
        self(text)

    def dsop(self, text, tag=None):
        self.lg.append(tag)
        self.seen.add(tag)
        self(text)

    @staticmethod
    def _cnt(lst, tags):
        last = -1
        for i, t in enumerate(lst):
            if t in tags:
                last = i
        if last < 0:
            return None
        return len(lst) - 1 - last

    def wait(self, vm=None, lg=None):
        s = ''
        if vm is not None:
            tags = vm if isinstance(vm, (list, set)) else [vm]
            assert vm == 'all' or all(t in self.seen for t in tags), tags
            assert vm == 'all' or all(self.count[t] == self.expect.get(t, self.count[t]) for t in tags), tags
            n = 0 if vm == 'all' else self._cnt(self.vm, tags)
            if n is not None:
                n = min(n, 63)
                s += f" vmcnt({n})"
                self.vm = self.vm[len(self.vm) - n:] if n else []
        if lg is not None:
            tags = lg if isinstance(lg, (list, set)) else [lg]
            assert lg == 'all' or all(t in self.seen for t in tags), tags
            n = 0 if lg == 'all' else self._cnt(self.lg, tags)
            if n is not None:
                n = min(n, 15)
                s += f" lgkmcnt({n})"
                self.lg = self.lg[len(self.lg) - n:] if n else []
        if s:
            self("s_waitcnt" + s)

    def pad(self):
        ins = self.ins
        changed = True
        total = 0
        while changed:
            changed = False
            labels = {x.label: i for i, x in enumerate(ins) if x.label}
            srcs = {}
            for i, x in enumerate(ins):
                if x.target:
                    srcs.setdefault(x.target, []).append(i)
            out = []
            inserted = {}
            for i, c in enumerate(ins):
                if not c.real or c.op == 's_nop':
                    continue
                worst = 0
                stack = [(i - 1, 0)]
                seen = set()
                while stack:
                    j, dist = stack.pop()
                    while j >= 0 and dist < 14:
                        key = (j, dist)
                        if key in seen:
                            break
                        seen.add(key)
                        p = ins[j]
                        if p.label:
                            for sidx in srcs.get(p.label, []):
                                stack.append((sidx, dist))
                            k = j - 1
                            while k >= 0 and not ins[k].real and not ins[k].label:
                                k -= 1
                            if k >= 0 and ins[k].op in ('s_branch', 's_endpgm'):
                                break
                            j -= 1
                            continue
                        if p.real:
                            nd = need(p, c) - dist
                            worst = max(worst, nd)
                            dist += p.ws + inserted.get(j, 0)
                        j -= 1
                if worst > 0:
                    inserted[i] = worst
            if inserted:
                for i, c in enumerate(ins):
                    if i in inserted:
                        out.append(Ins(f"  s_nop {inserted[i] - 1}"))
                        total += inserted[i]
                    out.append(c)
                ins = out
                self.ins = ins
                changed = True
        return total

    def text(self):
        return '\n'.join(x.text for x in self.ins) + '\n'


def interleave(*streams):
    out = []
    n = max(len(s) for s in streams)
    for i in range(n):
        for s in streams:
            if i < len(s):
                out.append(s[i])
    return out
```

```python
import sys, os, math, struct
sys.path.insert(0, os.path.dirname(os.path.abspath(__file__)))
from asmlib import *

NAME = "sequential_preLN__linear_kernel_hedgehog__dense_activation_gelu__prompt_kernel"

WS_EPOCH = 0
WS_XCC = 0x1000
WS_F2 = 0x2000
WS_F3 = 0x4000
WS_F4 = 0x6000
WS_OUTBOX = 0x10000
WS_STATS = 0x20000
WS_STAMP = 0x100000
WS_INBOX = 0x200000
WS_O = 0x400000
WS_H = 0x600000
WS_H1 = 0x800000
WS_SIZE = 0x1000000

L_X = 0
L_R = 65536
L_Q = 98304
L_XR = 0
L_ST = 8192
L_CS = 9216
L_WO = 12288
L_W1 = 49152
L_STG = 0
LDS_BYTES = 163840


def f2u(x):
    return struct.unpack('<I', struct.pack('<f', x))[0]


def gen(cfg):
    STAMPS = cfg.get('stamps', False)
    STOP = cfg.get('stop', 99)
    SPIN = cfg.get('spin', 1 << 18)
    FORCE_SLOW = cfg.get('slow', False)
    PLAIN_O = cfg.get('plain_o', True)
    PLAIN_H = cfg.get('plain_h', True)
    OUT_SC = cfg.get('out_sc', 'sc1')
    G1_AT = cfg.get('g1_at', 8)
    P = Prog()
    V = Alloc('v', 1, 256)
    S = Alloc('s', 3, 102)
    vPOLL = V.at(2, 2, 'poll')
    vt = [V(1, name=f'vt{i}') for i in range(6)]
    vN, vG, vPP, vL16, vTAG, vL4 = [V(1, name=n) for n in ['n', 'g', 'pp', 'l16', 'tag', 'l4']]
    voB = [V(1, name=f'voB{m}') for m in range(4)]
    vTB = [V(1, name=f'tb{j}') for j in range(4)]

    srd = {}
    for i, nm in enumerate(['x', 'wqkv', 'wo', 'w1', 'w2', 'ws', 'out', 'wphi', 'b1', 'b2']):
        srd[nm] = S.at(8 + 4 * i, 4, nm)
    karg = dict(x=0, wqkv=8, wphi=16, wo=24, w1=40, b1=48, w2=56, b2=64, out=72, ws=88)
    size = dict(x=2048 * 1024, wqkv=512 * 3072, wphi=32 * 512, wo=512 * 1024, w1=512 * 3584, b1=3584,
                w2=1792 * 1024, b2=1024, out=2048 * 1024, ws=WS_SIZE)

    sW, sRB, sHQ, sROT, sTAG, sFAST, sIC, sRB128 = [S(1, name=n) for n in
                                                    ['w', 'rb', 'hq', 'rot', 'tag', 'fast', 'ic', 'rb128']]
    sT = [S(1, name=f't{i}') for i in range(6)]
    sCNT = S(1, name='cnt')
    sP = [S(1, name=f'p{i}') for i in range(4)]
    sM = [S(2, name=f'm{i}') for i in range(3)]
    sK = S(2, name='k')
    stamps = []
    tail = []

    if STAMPS:
        sST = [S(2, name='stamp0'), S(2, name='stamp1'), S(2, name='stamp2')]
        vST = V.at(1, 1, 'stamps')

    def stamp(name):
        if STAMPS:
            k = len(stamps)
            if k >= 2:
                P(f"v_writelane_b32 {vST}, {sST[(k - 2) % 3][0]}, {k - 2}")
            stamps.append((name, None))
            P(f"s_memtime {sST[k % 3]}")

    def finish():
        if STAMPS:
            stamp('end')
            r2 = S(2, name='rt')
            P(f"s_memrealtime {r2}")
            P("s_waitcnt lgkmcnt(0)")
            k = len(stamps)
            for i in (k - 2, k - 1):
                P(f"v_writelane_b32 {vST}, {sST[i % 3][0]}, {i}")
            for i, r in enumerate([sRT0[0], r2[0], sFAST]):
                P(f"v_writelane_b32 {vST}, {r}, {61 + i}")
            P(f"s_lshl_b32 {sT[0]}, s2, 2\ns_add_u32 {sT[0]}, {sT[0]}, {sW}\ns_lshl_b32 {sT[0]}, {sT[0]}, 8")
            P(f"s_add_u32 {sT[0]}, {sT[0]}, {WS_STAMP}")
            P(f"v_lshlrev_b32 {vt[0]}, 2, v0")
            P(f"buffer_store_dword {vST}, {vt[0]}, {srd['ws']}, {sT[0]} offen")
            if cfg.get('dbg'):
                P(f"s_load_dwordx2 {srd['b1'][0:2]}, s[0:1], 80\ns_mov_b32 {srd['b1'][2]}, 256\ns_waitcnt lgkmcnt(0)")
                P(f"s_not_b32 {sT[1]}, {sRT0[0]}\nv_mov_b32 {vt[1]}, {r2[0]}\nv_mov_b32 {vt[2]}, {sT[1]}\nv_mov_b32 {vt[3]}, 0\ns_mov_b64 exec, 1")
                P(f"buffer_atomic_umax {vt[1]}, {vt[3]}, {srd['b1']}, 0 offen\nbuffer_atomic_umax {vt[2]}, {vt[3]}, {srd['b1']}, 0 offen offset:4")
                P("s_mov_b64 exec, -1")
                sel = cfg['dbg']
                lab = P.label('dbg')
                P(f"s_or_b32 {sT[2]}, s2, {sW}\ns_cmp_lg_u32 {sT[2]}, 0\ns_cbranch_scc1 {lab}")
                P(f"v_readlane_b32 {sT[2]}, {vST}, 0")
                for i, nm in enumerate(sel):
                    idx = [x[0] for x in stamps].index(nm)
                    P(f"v_readlane_b32 {sT[3]}, {vST}, {idx}\ns_nop 3\ns_sub_u32 {sT[3]}, {sT[3]}, {sT[2]}\nv_mov_b32 {vt[1]}, {sT[3]}\ns_mov_b64 exec, 1")
                    P(f"buffer_store_dword {vt[1]}, {vt[3]}, {srd['b1']}, 0 offen offset:{8 + 4 * i}\ns_mov_b64 exec, -1")
                P(f"{lab}:")
        if cfg.get('diag_hold'):
            P(f"L_hold:\ns_memrealtime {sK}\ns_waitcnt lgkmcnt(0)\ns_sub_u32 {sT[0]}, {sK[0]}, {sRT0[0]}\ns_cmp_lt_u32 {sT[0]}, {cfg['diag_hold']}\ns_cbranch_scc1 L_hold")
        P("s_waitcnt vmcnt(0)")
        P("L_end:")
        P("s_endpgm")
        for l1, l2, lines in tail:
            P(f"{l1}:")
            for t in lines:
                P(t)
            P(f"s_branch {l2}")
        P("L_last:")

    P("s_cmp_ge_u32 s2, 256\ns_cbranch_scc1 L_end")
    for nm in ['x', 'wqkv', 'ws', 'wo', 'wphi', 'w1', 'w2', 'out', 'b1', 'b2']:
        P(f"s_load_dwordx2 {srd[nm][0:2]}, s[0:1], {karg[nm]}")
    if STAMPS or cfg.get('diag_hold'):
        sRT0 = S(2, name='rt0')
        P(f"s_memrealtime {sRT0}")
    stamp('start')
    P(f"""v_lshrrev_b32 {vt[0]}, 6, v0
    s_lshr_b32 {sT[0]}, s2, 3
    v_and_b32 {vt[1]}, 3, v0
    v_readfirstlane_b32 {sW}, {vt[0]}
    s_and_b32 {sHQ}, {sT[0]}, 7
    s_lshr_b32 {sT[1]}, {sT[0]}, 3
    s_and_b32 {sRB}, s2, 7
    s_lshl_b32 {sRB}, {sRB}, 2
    s_add_u32 {sRB}, {sRB}, {sT[1]}
    s_add_u32 {sROT}, {sT[1]}, {sHQ}
    s_and_b32 {sROT}, {sROT}, 3""")
    if cfg.get('codepf', True):
        pa = V(2, name='pa')
        P(f"""v_lshl_add_u32 {vt[1]}, {vt[0]}, 2, {vt[1]}
        s_lshl_b32 {sT[2]}, {sT[0]}, 4
        v_add_u32 {vt[1]}, {sT[2]}, {vt[1]}
        v_lshlrev_b32 {vt[1]}, 7, {vt[1]}
        s_getpc_b64 {sK}
        v_min_u32 {vt[1]}, L_end-{NAME}-256, {vt[1]}
        v_mov_b32 {pa[1]}, {sK[1]}
        v_add_co_u32 {pa[0]}, vcc, {sK[0]}, {vt[1]}
        v_addc_co_u32 {pa[1]}, vcc, 0, {pa[1]}, vcc
        s_mov_b64 exec, 15""")
        P.vmem(f"global_load_dword {vt[5]}, {pa}, off", 'pf')
        P("s_mov_b64 exec, -1")
        V.free(pa)
    P(f"v_and_b32 v0, 63, v0")
    voX = [V(1, name=f'voX{m}') for m in range(4)]
    voW = [V(1, name=f'voW{m}') for m in range(2)]
    P(f"""v_and_b32 {vN}, 15, v0
    v_lshrrev_b32 {vG}, 4, v0
    v_xor_b32 {vt[0]}, {vN}, {vG}
    v_lshlrev_b32 {vt[0]}, 4, {vt[0]}
    v_lshl_or_b32 {voX[0]}, {vG}, 10, {vt[0]}""")
    for m in range(1, 4):
        P(f"v_xor_b32 {voX[m]}, {64 * m}, {voX[0]}\nv_add_u32 {voX[m]}, {3072 * m}, {voX[m]}")
    vCH = V(1, name='ch')
    P(f"""v_lshrrev_b32 {vPP}, 3, v0
    v_and_b32 {vt[0]}, 6, {vPP}
    v_and_b32 {vt[1]}, 7, v0
    v_xor_b32 {vCH}, {vt[0]}, {vt[1]}
    v_lshlrev_b32 {vCH}, 4, {vCH}
    v_and_b32 {vt[0]}, 4, {vPP}
    v_add_u32 {vt[0]}, {vt[0]}, {vPP}
    v_mul_u32_u24 {vt[0]}, 3072, {vt[0]}
    v_add_u32 {voW[0]}, {vt[0]}, {vCH}
    v_add_u32 {voW[1]}, {49152 - 1024}, {voW[0]}""")
    for nm in srd:
        P(f"s_mov_b32 {srd[nm][2]}, {size[nm]}\ns_mov_b32 {srd[nm][3]}, 0x20000")
    sXB, sWB = S(1, name='xb'), S(1, name='wb')
    sCK = [S(1, name=f'ck{p}') for p in range(4)]
    sW2K = S(1, name='w2k')
    P(f"""s_lshl_b32 {sXB}, {sRB}, 2
    s_add_u32 {sXB}, {sXB}, {sW}
    s_lshl_b32 {sXB}, {sXB}, 14
    s_and_b32 {sT[0]}, {sW}, 1
    s_mul_i32 {sT[0]}, {sT[0]}, 12288
    s_lshr_b32 {sT[1]}, {sW}, 1
    s_add_u32 {sT[1]}, {sT[1]}, 1
    s_lshl_b32 {sT[1]}, {sT[1]}, 10
    s_add_u32 {sWB}, {sT[0]}, {sT[1]}
    s_lshl_b32 {sT[0]}, {sHQ}, 7
    s_add_u32 {sWB}, {sWB}, {sT[0]}
    s_lshl_b32 {sW2K}, {sW}, 11""")
    for p in range(4):
        P(f"s_add_u32 {sCK[p]}, {sROT}, {p}\ns_and_b32 {sCK[p]}, {sCK[p]}, 3")

    def it_x(p):
        def mk(m):
            def f():
                if m == 0:
                    P(f"""s_lshl_b32 {sP[0]}, {sCK[p]}, 8
                    s_add_u32 {sP[0]}, {sP[0]}, {sXB}
                    s_lshl_b32 {sP[1]}, {sW2K}, 1
                    s_add_u32 m0, {sP[1]}, {L_X + p * 16384}""")
                P.vmem(f"buffer_load_dwordx4 {voX[m]}, {srd['x']}, {sP[0]} offen offset:{1024 * m} lds", ('X', p), 4)
            return f
        return [mk(m) for m in range(4)]

    def it_w(s):
        p, sp = s >> 2, s & 3

        def mk(gp):
            def f():
                if gp == 0:
                    if sp == 0:
                        P(f"s_mul_i32 {sP[2]}, {sCK[p]}, 393216\ns_add_u32 {sP[2]}, {sP[2]}, {sWB}")
                    else:
                        P(f"s_add_u32 {sP[2]}, {sP[2]}, 98304")
                    P(f"s_add_u32 m0, {sW2K}, {L_R + (s % 12) * 8192}")
                    assert s < 12 or state['iter'] >= s - 11
                P.vmem(f"buffer_load_dwordx4 {voW[gp]}, {srd['wqkv']}, {sP[2]} offen offset:{1024 * gp} lds", ('W', s), 2)
            return f
        return [mk(0), mk(1)]

    state = {'iter': -1}
    itemsA = []
    for p in range(4):
        itemsA += it_x(p)
        for s in range(4 * p, 4 * p + 4):
            itemsA += it_w(s)
    P("s_waitcnt lgkmcnt(0)")
    P(f"s_load_dword {sTAG}, {srd['ws'][0:2]}, {WS_EPOCH}")
    stamp('karg')
    for i in range(cfg.get('a_first', 6)):
        itemsA.pop(0)()
    pre = [itemsA.pop(0) for i in range(cfg.get('a_pre', 18) - cfg.get('a_first', 6))]
    stA = P.pace(pre, 64)

    P(f"s_lshr_b32 {sRB128}, {sRB}, 1\ns_and_b32 {sIC}, {sRB}, 1\ns_lshl_b32 {sIC}, {sIC}, 3\ns_add_u32 {sIC}, {sIC}, {sHQ}")
    P(f"s_getreg_b32 {sFAST}, hwreg(HW_REG_XCC_ID, 0, 4)")
    P(f"v_lshlrev_b32 {vL16}, 4, v0")
    vXA = [[V(1, name=f'xa{u}{k}') for k in range(4)] for u in range(4)]
    P(f"""v_xor_b32 {vt[0]}, {vN}, {vG}
    v_lshlrev_b32 {vt[0]}, 4, {vt[0]}
    v_lshl_or_b32 {vt[0]}, {vN}, 8, {vt[0]}
    s_lshl_b32 {sT[0]}, {sW}, 12
    v_or_b32 {vXA[0][0]}, {sT[0]}, {vt[0]}""")
    for u in range(4):
        for k in range(4):
            if u or k:
                P(f"v_xor_b32 {vXA[u][k]}, {(u << 12) | (k << 6)}, {vXA[0][0]}")
    vTR0 = V(1, name='tr0')
    P(f"""v_lshrrev_b32 {vt[0]}, 2, v0
    v_lshlrev_b32 {vt[1]}, 7, {vt[0]}
    v_and_b32 {vt[2]}, 3, v0
    v_lshl_or_b32 {vt[1]}, {vt[2]}, 3, {vt[1]}
    v_and_b32 {vt[0]}, 6, {vt[0]}
    v_lshl_or_b32 {vTR0}, {vt[0]}, 4, {vt[1]}""")
    vWA = [V(1, name='wa0'), V(1, name='wa1')]
    P(f"""s_lshl_b32 {sT[0]}, {sW}, 5
    v_xor_b32 {vt[0]}, {sT[0]}, {vTR0}
    v_add_u32 {vWA[0]}, {L_R}, {vt[0]}
    v_add_u32 {vWA[1]}, {L_R + 65536}, {vt[0]}""")
    vONE = V(4, name='ones')
    for i in range(4):
        P(f"v_mov_b32 {vONE[i]}, 0x3f803f80")
    vID, vIS = V(2, name='ident'), V(2, name='isum')
    P(f"v_and_b32 {vt[0]}, 3, v0")
    for i in range(3):
        P(f"v_cmp_eq_u32 {sM[i]}, {i + 1}, {vt[0]}")
    P(f"""v_mov_b32 {vt[1]}, 0x3f80
    v_mov_b32 {vt[2]}, 0x3f800000
    v_mov_b32 {vt[3]}, 0
    v_cndmask_b32 {vIS[0]}, {vt[1]}, {vt[2]}, {sM[0]}
    v_cndmask_b32 {vIS[1]}, {vt[2]}, {vt[1]}, {sM[1]}
    v_cmp_gt_u32 vcc, 2, {vt[0]}
    v_lshrrev_b32 {vt[4]}, 2, {vN}
    v_cndmask_b32 {vIS[0]}, {vt[3]}, {vIS[0]}, vcc
    v_cndmask_b32 {vIS[1]}, {vIS[1]}, {vt[3]}, vcc""")
    sDIAG = S(2, name='diag')
    P(f"""v_cmp_eq_u32 {sDIAG}, {vt[4]}, {vG}
    v_cndmask_b32 {vID[0]}, {vt[3]}, {vIS[0]}, {sDIAG}
    v_cndmask_b32 {vID[1]}, {vt[3]}, {vIS[1]}, {sDIAG}""")
    P("s_waitcnt lgkmcnt(0)")
    P(f"s_mul_i32 {sTAG}, {sTAG}, 0x9E3779B1\ns_add_u32 {sTAG}, {sTAG}, 0x7F4A7C15")
    rec = V(2, name='rec')
    P(f"""v_mov_b32 {vTAG}, {sTAG}
    v_mov_b32 {rec[0]}, {sFAST}
    v_mov_b32 {rec[1]}, {sTAG}
    s_lshl_b32 {sT[0]}, {sRB128}, 4
    s_add_u32 {sT[0]}, {sT[0]}, {sIC}
    s_lshl_b32 {sT[0]}, {sT[0]}, 3
    s_add_u32 {sT[0]}, {sT[0]}, {WS_XCC}
    v_mov_b32 {vt[0]}, 0""")
    lab = P.label('xcc')
    with P.nopace():
        P(f"s_cmp_lg_u32 {sW}, 0\ns_cbranch_scc1 {lab}\ns_mov_b64 exec, 1")
        P.vmem_maybe(f"buffer_store_dwordx2 {rec}, {vt[0]}, {srd['ws']}, {sT[0]} offen sc1")
        P(f"s_mov_b64 exec, -1\n{lab}:")
    vPH = V(4, name='phraw')
    vPHA = V(1, name='pha')
    P(f"v_lshlrev_b32 {vPHA}, 1, {vN}\nv_lshl_or_b32 {vPHA}, {vG}, 7, {vPHA}")

    def it_phi():
        def mk(i):
            def f():
                if i == 0:
                    P(f"s_lshl_b32 {sP[0]}, {sHQ}, 2\ns_add_u32 {sP[0]}, {sP[0]}, {sW}\ns_lshl_b32 {sP[0]}, {sP[0]}, 9")
                P.vmem(f"buffer_load_ushort {vPH[i]}, {vPHA}, {srd['wphi']}, {sP[0]} offen offset:{32 * i}", 'phi', 4)
            return f
        return [mk(i) for i in range(4)]
    V.free(rec)

    aX = Reg('a', 0, 256)
    xf = lambda s, u: aX.sub(s * 16 + u * 4, 4)
    accK = [V(4, name=f'k{u}') for u in range(4)]
    accV = [V(4, name=f'v{u}') for u in range(4)]
    gG, gS, csK, csV = V(4, name='G'), V(4, name='S'), V(4, name='csk'), V(4, name='csv')
    wf = [[V(4, name=f'wf{b}{t}') for t in range(2)] for b in range(2)]
    sQB = S(1, name='qb')
    P(f"""s_and_b32 {sT[0]}, {sW}, 1
    s_mul_i32 {sT[0]}, {sT[0]}, 49152
    s_lshr_b32 {sT[1]}, {sW}, 1
    s_mul_i32 {sT[1]}, {sT[1]}, 12288
    s_add_u32 {sQB}, {sT[0]}, {sT[1]}
    s_lshl_b32 {sT[0]}, {sHQ}, 7
    s_add_u32 {sQB}, {sQB}, {sT[0]}""")

    def it_q(t):
        p, sp = t >> 2, t & 3

        def f():
            assert state['iter'] >= 5 + t // 2
            if sp == 0:
                P(f"s_mul_i32 {sP[3]}, {sCK[p]}, 393216\ns_add_u32 {sP[3]}, {sP[3]}, {sQB}")
            else:
                P(f"s_add_u32 {sP[3]}, {sP[3]}, 98304")
            P(f"s_lshr_b32 {sP[1]}, {sW2K}, 1\ns_add_u32 m0, {sP[1]}, {L_Q + t * 4096}")
            P.vmem(f"buffer_load_dwordx4 {voW[0]}, {srd['wqkv']}, {sP[3]} offen lds", ('Q', t))
        return [f]

    def rd_a(s):
        p, sp = s >> 2, s & 3
        slot = s % 12
        va, off = (vWA[0], slot * 8192) if slot < 8 else (vWA[1], (slot - 8) * 8192)
        xr_ = [f"ds_read_b128 {xf(s, u)}, {vXA[u][sp]} offset:{L_X + p * 16384}" for u in range(4)]
        wr_ = [[f"ds_read_b64_tr_b16 {wf[s & 1][t].sub(2 * hf, 2)}, {va} offset:{off + t * 4096 + hf * 2048}" for hf in range(2)] for t in range(2)]
        lst = wr_[0] + xr_ + wr_[1]
        return [(lambda x=x: P.dsop(x, ('A', s))) for x in lst]

    M32 = "v_mfma_f32_16x16x32_bf16"
    M16 = "v_mfma_f32_16x16x16_bf16"

    def mf(d, a, b, first, op=M32):
        if state.get('nomfma'):
            return
        P(f"{op} {d}, {a}, {b}, {'0' if first else d}")

    def mm_a(s):
        k, v = wf[s & 1]
        f = s == 0
        l_ = [(accK[u], k, xf(s, u)) for u in range(4)] + [(gG, xf(s, 0), xf(s, 0)), (csK, k, vONE)]
        l_ += [(accV[u], v, xf(s, u)) for u in range(4)] + [(gS, vONE, xf(s, 0)), (csV, v, vONE)]
        return [(lambda x=x: mf(x[0], x[1], x[2], f)) for x in l_]

    P(f"v_lshl_add_u32 {voB[0]}, {vPP}, 10, {vCH}")
    for m in range(1, 4):
        P(f"v_add_u32 {voB[m]}, {7168 * m}, {voB[0]}")
    V.free(vCH)

    vXR = V(1, name='xra')
    P(f"""v_and_b32 {vXR}, 7, v0
    v_xor_b32 {vXR}, {vXR}, {vPP}
    v_lshlrev_b32 {vXR}, 4, {vXR}
    v_lshl_or_b32 {vXR}, {vPP}, 10, {vXR}""")

    def it_xres():
        def f0():
            assert state['iter'] >= 5
            P(f"s_lshl_b32 {sP[0]}, {sHQ}, 7\ns_add_u32 {sP[0]}, {sP[0]}, {sXB}\ns_add_u32 m0, {sW2K}, {L_XR}")
            P.vmem(f"buffer_load_dwordx4 {vXR}, {srd['x']}, {sP[0]} offen lds", 'xres', 2)

        def f1():
            P(f"s_add_u32 {sP[0]}, {sP[0]}, {8192 - 1024}")
            P.vmem(f"buffer_load_dwordx4 {vXR}, {srd['x']}, {sP[0]} offen offset:1024 lds", 'xres', 2)
        return [f0, f1]

    def it_wo():
        def mk(i):
            q, m = i >> 2, i & 3

            def f():
                assert state['iter'] >= 16
                if i == 0:
                    P(f"""s_lshl_b32 {sP[2]}, {sW}, 17
                    s_lshl_b32 {sP[1]}, {sHQ}, 7
                    s_add_u32 {sP[2]}, {sP[2]}, {sP[1]}""")
                elif m == 0:
                    P(f"s_add_u32 {sP[2]}, {sP[2]}, 32768")
                P(f"s_lshl_b32 {sP[1]}, {sW}, 14\ns_add_u32 m0, {sP[1]}, {L_WO + q * 4096}")
                P.vmem(f"buffer_load_dwordx4 {voB[m]}, {srd['wo']}, {sP[2]} offen offset:{1024 * m} lds", 'wo', 16)
            return f
        return [mk(i) for i in range(16)]

    P.unpace(stA)
    itemsA += it_phi()
    for t in range(16):
        itemsA += it_q(t)
    itemsA += it_xres()
    NI = cfg.get('a_per', 3)
    P.wait(vm=('W', 0))
    P("s_barrier")
    stamp('a0')
    for f in rd_a(0):
        f()
    state['nomfma'] = cfg.get('a_nomfma')
    for s in range(16):
        rds = []
        if s < 15:
            P.wait(vm=('W', s + 1))
            if not cfg.get('a_nobar'):
                P("s_barrier")
            if not cfg.get('a_nods'):
                rds = rd_a(s + 1)
        state['iter'] = s
        if not cfg.get('a_nods'):
            P.wait(lg=('A', s))
        at = [1, 5, 9, 11][:NI] if P.count.get(('W', 15), 0) < 2 else [1, 7][:cfg.get('a_per2', 2)]
        for i, f in enumerate(mm_a(s)):
            f()
            if rds:
                rds.pop(0)()
            if i in at and itemsA:
                itemsA.pop(0)()
    state['nomfma'] = False
    stamp('a1')
    V.free(vXA, wf[1], voX)
    stA = P.pace(itemsA, cfg.get('iv_kepi', 110))
    P(f"""v_cndmask_b32 {vt[0]}, {gG[0]}, {gG[1]}, {sM[0]}
    v_mul_f32 {vt[1]}, {f2u(1 / 512)}, {gS[0]}
    v_cndmask_b32 {vt[0]}, {vt[0]}, {gG[2]}, {sM[1]}
    v_cndmask_b32 {vt[0]}, {vt[0]}, {gG[3]}, {sM[2]}
    v_mul_f32 {vt[2]}, {vt[1]}, {vt[1]}
    v_mov_b32 {vt[3]}, {f2u(1 / 512)}
    v_fma_f32 {vt[0]}, {vt[0]}, {vt[3]}, -{vt[2]}
    v_max_f32 {vt[0]}, 0, {vt[0]}
    v_add_f32 {vt[0]}, {f2u(1e-5)}, {vt[0]}
    v_rsq_f32 {gG[0]}, {vt[0]}
    s_lshl_b32 {sT[0]}, {sW}, 7
    v_lshl_add_u32 {vt[4]}, {vN}, 3, {sT[0]}
    v_mul_f32 {gG[1]}, -{vt[1]}, {gG[0]}""")
    with P.nopace():
        P(f"s_mov_b64 exec, {sDIAG}")
        P.dsop(f"ds_write_b64 {vt[4]}, {gG[0:2]} offset:{L_ST}", 'st')
        P("s_mov_b64 exec, -1")
    P.wait(lg='all')
    P("s_barrier")
    state['iter'] = 16
    wo_items = it_wo()
    for i in range(cfg.get('wo_early', 16)):
        itemsA.append(wo_items.pop(0))
    st = [V(2, name=f'st{u}') for u in range(4)]
    for u in range(4):
        if u:
            P(f"v_xor_b32 {vt[u]}, {u << 7}, {vt[4]}")
        P.dsop(f"ds_read_b64 {st[u]}, {vt[u] if u else vt[4]} offset:{L_ST}", 'st')
    V.free(gG, gS)
    P.wait(vm='phi')
    vPHI = V(2, name='phi')
    P(f"v_lshl_or_b32 {vPHI[0]}, {vPH[1]}, 16, {vPH[0]}\nv_lshl_or_b32 {vPHI[1]}, {vPH[3]}, 16, {vPH[2]}")
    V.free(vPH, vPHA)
    P.wait(lg='st')

    LO = "op_sel:[0,0] op_sel_hi:[1,0]"
    HI = "op_sel:[0,1] op_sel_hi:[1,1]"

    def fold(acc, cs, dst):
        tmp = [V(4) for u in range(4)]
        streams = []
        for u in range(4):
            streams.append([
                f"v_pk_mul_f32 {tmp[u][0:2]}, {cs[0:2]}, {st[u]} {HI}",
                f"v_pk_mul_f32 {tmp[u][2:4]}, {cs[2:4]}, {st[u]} {HI}",
                f"v_pk_fma_f32 {acc[u][0:2]}, {acc[u][0:2]}, {st[u]}, {tmp[u][0:2]} op_sel:[0,0,0] op_sel_hi:[1,0,1]",
                f"v_pk_fma_f32 {acc[u][2:4]}, {acc[u][2:4]}, {st[u]}, {tmp[u][2:4]} op_sel:[0,0,0] op_sel_hi:[1,0,1]",
                f"v_cvt_pk_bf16_f32 {dst[u][0]}, {acc[u][0]}, {acc[u][1]}",
                f"v_cvt_pk_bf16_f32 {dst[u][1]}, {acc[u][2]}, {acc[u][3]}"])
        for x in interleave(*streams):
            P(x)
        V.free(tmp)

    P(f"s_mov_b32 {sK[0]}, {f2u(math.log2(math.e))}\ns_mov_b32 {sK[1]}, {f2u(-math.log2(math.e))}")

    def xreduce(a0, a1, b0, b1, op, mid):
        return [
            f"v_permlane32_swap_b32 {a0}, {a1}",
            f"v_permlane32_swap_b32 {b0}, {b1}",
            f"{op} {a0}, {a0}, {a1}",
            f"{op} {b0}, {b0}, {b1}",
            f"v_permlane16_swap_b32 {a0}, {b0}",
            f"{op} {a0}, {a0}, {b0}",
            mid(a0),
            f"v_mov_b32 {b0}, {a0}",
            f"v_permlane16_swap_b32 {a0}, {b0}",
            f"v_mov_b32 {a1}, {a0}",
            f"v_mov_b32 {b1}, {b0}",
            f"v_permlane32_swap_b32 {a0}, {a1}",
            f"v_permlane32_swap_b32 {b0}, {b1}"]

    def softmax(acc, cs, out, hook=None):
        qb = [V(2) for u in range(4)]
        fold(acc, cs, qb)
        p = acc
        for u in range(4):
            mf(p[u], vPHI, qb[u], True, M16)
        V.free(qb)
        mx = [V(2) for u in range(4)]
        en = [V(4) for u in range(4)]
        streams = []
        for u in range(4):
            streams.append([
                f"v_max3_f32 {mx[u][0]}, {p[u][0]}, {p[u][1]}, {p[u][2]}",
                f"v_max3_f32 {mx[u][1]}, -{p[u][0]}, -{p[u][1]}, -{p[u][2]}",
                f"v_max_f32 {mx[u][0]}, {mx[u][0]}, {p[u][3]}",
                f"v_max_f32_e64 {mx[u][1]}, {mx[u][1]}, -{p[u][3]}"])
        for x in interleave(*streams):
            P(x)
        mid = lambda r: f"v_mul_f32 {r}, {sK[1]}, {r}"
        for x in interleave(*[xreduce(mx[a][0], mx[a][1], mx[a + 1][0], mx[a + 1][1], "v_max_f32", mid) for a in (0, 2)]):
            P(x)
        if hook:
            hook(0)
        streams = []
        for u in range(4):
            s_ = []
            for h in range(2):
                s_.append(f"v_pk_fma_f32 {en[u].sub(2 * h, 2)}, {p[u].sub(2 * h, 2)}, {sK}, {mx[u]} op_sel:[0,1,1] op_sel_hi:[1,1,1]")
                s_.append(f"v_pk_fma_f32 {p[u].sub(2 * h, 2)}, {p[u].sub(2 * h, 2)}, {sK}, {mx[u]} op_sel:[0,0,0] op_sel_hi:[1,0,0]")
            for r in range(4):
                s_.append(f"v_exp_f32 {p[u][r]}, {p[u][r]}")
                s_.append(f"v_exp_f32 {en[u][r]}, {en[u][r]}")
            streams.append(s_)
        for x in interleave(*streams):
            P(x)
        if hook:
            hook(1)
        tm = [V(4) for u in range(4)]
        streams = []
        for u in range(4):
            streams.append([
                f"v_pk_add_f32 {tm[u][0:2]}, {p[u][0:2]}, {p[u][2:4]}",
                f"v_pk_add_f32 {tm[u][2:4]}, {en[u][0:2]}, {en[u][2:4]}",
                f"v_add_f32 {mx[u][0]}, {tm[u][0]}, {tm[u][1]}",
                f"v_add_f32 {mx[u][1]}, {tm[u][2]}, {tm[u][3]}"])
        for x in interleave(*streams):
            P(x)
        V.free(tm)
        mid = lambda r: f"v_rcp_f32 {r}, {r}"
        for x in interleave(*[xreduce(mx[a][0], mx[a][1], mx[a + 1][0], mx[a + 1][1], "v_add_f32", mid) for a in (0, 2)]):
            P(x)
        streams = []
        for u in range(4):
            streams.append([
                f"v_pk_mul_f32 {p[u][0:2]}, {p[u][0:2]}, {mx[u]} {LO}",
                f"v_pk_mul_f32 {p[u][2:4]}, {p[u][2:4]}, {mx[u]} {LO}",
                f"v_pk_mul_f32 {en[u][0:2]}, {en[u][0:2]}, {mx[u]} {HI}",
                f"v_pk_mul_f32 {en[u][2:4]}, {en[u][2:4]}, {mx[u]} {HI}",
                f"v_cvt_pk_bf16_f32 {out[u][0]}, {p[u][0]}, {p[u][1]}",
                f"v_cvt_pk_bf16_f32 {out[u][1]}, {p[u][2]}, {p[u][3]}",
                f"v_cvt_pk_bf16_f32 {out[u][2]}, {en[u][0]}, {en[u][1]}",
                f"v_cvt_pk_bf16_f32 {out[u][3]}, {en[u][2]}, {en[u][3]}"])
        for x in interleave(*streams):
            P(x)
        V.free(mx, en)

    phk = [V(4, name=f'phk{u}') for u in range(4)]
    softmax(accK, csK, phk)
    V.free(csK)
    vb = [V(2, name=f'vb{u}') for u in range(4)]
    fold(accV, csV, vb)
    V.free(csV)
    tp = [V(4) for u in range(4)]
    pT = [[V(4, name=f'pT{sg}{pr}') for pr in range(2)] for sg in range(2)]
    vT = [V(4, name=f'vT{pr}') for pr in range(2)]
    for u in range(4):
        mf(accK[u], phk[u][0:2], vID, True, M16)
    for u in range(4):
        mf(tp[u], phk[u][2:4], vID, True, M16)
    for u in range(4):
        mf(accV[u], vb[u], vID, True, M16)
    for src, dst in ((accK, pT[0]), (tp, pT[1]), (accV, vT)):
        for u in range(4):
            d = dst[u >> 1].sub(2 * (u & 1), 2)
            P(f"v_cvt_pk_bf16_f32 {d[0]}, {src[u][0]}, {src[u][1]}\nv_cvt_pk_bf16_f32 {d[1]}, {src[u][2]}, {src[u][3]}")
    V.free(phk, vb)
    kv, zz = [accK[0], accK[1]], [accK[2], accK[3]]
    for pr in range(2):
        for sg in range(2):
            mf(kv[sg], pT[sg][pr], vT[pr], pr == 0)
        for sg in range(2):
            mf(zz[sg], pT[sg][pr], vONE, pr == 0)
    V.free(pT, vT)
    gr = [tp[0], tp[1]]
    P(f"""v_lshlrev_b32 {vt[0]}, 4, {vN}
    v_lshl_or_b32 {vt[0]}, {vG}, 13, {vt[0]}
    s_lshl_b32 {sT[0]}, {sHQ}, 2
    s_add_u32 {sT[0]}, {sT[0]}, {sW}
    s_lshl_b32 {sT[0]}, {sT[0]}, 8
    s_add_u32 {sT[0]}, {sT[0]}, {sRB}
    s_lshl_b32 {sT[0]}, {sT[0]}, 8
    s_add_u32 {sT[0]}, {sT[0]}, {WS_INBOX}
    s_add_u32 {sT[1]}, {sT[0]}, 32768""")
    streams = []
    for sg in range(2):
        streams.append([
            f"v_mov_b32 {gr[sg][3]}, {vTAG}",
            f"v_cvt_pk_bf16_f32 {gr[sg][0]}, {kv[sg][0]}, {kv[sg][1]}",
            f"v_cvt_pk_bf16_f32 {gr[sg][1]}, {kv[sg][2]}, {kv[sg][3]}",
            f"v_cndmask_b32 {gr[sg][2]}, {zz[sg][0]}, {zz[sg][1]}, {sM[0]}",
            f"v_cndmask_b32 {gr[sg][2]}, {gr[sg][2]}, {zz[sg][2]}, {sM[1]}",
            f"v_cndmask_b32 {gr[sg][2]}, {gr[sg][2]}, {zz[sg][3]}, {sM[2]}"])
    for x in interleave(*streams):
        P(x)
    P.unpace(stA, flush=False)
    for sg in range(2):
        P.vmem(f"buffer_store_dwordx4 {gr[sg]}, {vt[0]}, {srd['ws']}, {sT[sg]} offen sc1", 'slice')
    stamp('T0')
    V.free(tp[2:], accV)
    if STOP <= 1:
        finish()
        return P, V, S, stamps

    accQ = accK
    csQ = V(4, name='csq')
    gi = [V(4, name=f'gi{m}') for m in range(8)]
    sG1 = S(1, name='g1')
    P(f"""s_lshl_b32 {sG1}, {sHQ}, 5
    s_add_u32 {sG1}, {sG1}, {sRB}
    s_lshl_b32 {sG1}, {sG1}, 13
    s_add_u32 {sG1}, {sG1}, {WS_INBOX}""")

    def g1_loads():
        P(f"s_add_u32 {sT[0]}, {sG1}, 4096")
        for m in range(8):
            P.vmem_maybe(f"buffer_load_dwordx4 {gi[m]}, {vL16}, {srd['ws']}, {sG1 if m < 4 else sT[0]} offen offset:{1024 * (m & 3)} sc1")

    vPT = V(1, name='pt')
    P(f"v_lshlrev_b32 {vPT}, 7, v0")

    def it_pre():
        def data(base):
            def f():
                P(f"""s_lshl_b32 {sP[0]}, {sRB}, 2
                s_add_u32 {sP[0]}, {sP[0]}, {sW}
                s_lshl_b32 {sP[0]}, {sP[0]}, 3
                s_add_u32 {sP[0]}, {sP[0]}, {sHQ}
                s_lshl_b32 {sP[0]}, {sP[0]}, 11
                s_add_u32 {sP[0]}, {sP[0]}, {base}
                s_mov_b64 exec, 0xffff""")
                P.vmem(f"buffer_load_dword {vt[5]}, {vPT}, {srd['ws']}, {sP[0]} offen sc1", 'pre')
                P("s_mov_b64 exec, -1")
            return f

        def small():
            P(f"""s_lshl_b32 {sP[0]}, {sRB}, 2
            s_add_u32 {sP[0]}, {sP[0]}, {sW}
            s_lshl_b32 {sP[0]}, {sP[0]}, 3
            s_add_u32 {sP[0]}, {sP[0]}, {sHQ}
            s_lshl_b32 {sP[0]}, {sP[0]}, 7
            s_add_u32 {sP[0]}, {sP[0]}, {WS_STATS}
            s_mov_b64 exec, 1""")
            P.vmem(f"buffer_load_dword {vt[5]}, {vPT}, {srd['ws']}, {sP[0]} offen sc1", 'pre')
            P(f"""s_cmp_eq_u32 {sW}, 0
            s_cselect_b32 {sP[0]}, {sRB}, {sRB128}
            s_lshl_b32 {sP[0]}, {sP[0]}, 7
            s_min_u32 {sP[1]}, {sW}, 2
            s_lshl_b32 {sP[1]}, {sP[1]}, 13
            s_add_u32 {sP[0]}, {sP[0]}, {sP[1]}
            s_add_u32 {sP[0]}, {sP[0]}, {WS_F2}""")
            P.vmem(f"buffer_load_dword {vt[5]}, {vPT}, {srd['ws']}, {sP[0]} offen sc1", 'pre')
            P("s_mov_b64 exec, -1")
        return [small] + ([data(WS_O)] if PLAIN_O else []) + ([data(WS_H)] if PLAIN_H else [])

    for f in itemsA + wo_items:
        f()
    V.free(vXR, voW)
    qf = wf[0] + [V(4), V(4)]

    def rd_q(t, hf):
        va, off = (vWA[0], 32768 + t * 4096) if t < 8 else (vWA[1], (t - 8) * 4096)
        P.dsop(f"ds_read_b64_tr_b16 {qf[t & 3].sub(2 * hf, 2)}, {va} offset:{off + hf * 2048}", ('Q', t))

    vo1 = [V(1, name=f'vo1{j}') for j in range(7)]
    P(f"s_mov_b32 {sT[0]}, 4682")
    for j in range(7):
        P(f"""v_add_u32 {vt[0]}, {64 * j}, v0
        v_mul_u32_u24 {vt[1]}, {sT[0]}, {vt[0]}
        v_lshrrev_b32 {vt[1]}, 16, {vt[1]}
        v_lshlrev_b32 {vt[0]}, 4, {vt[0]}
        v_mul_u32_u24 {vt[1]}, {3584 - 224}, {vt[1]}""")
        if j & 3:
            P(f"v_add_u32 {vt[0]}, {vt[0]}, {vt[1]}\nv_subrev_u32 {vo1[j]}, {1024 * (j & 3)}, {vt[0]}")
        else:
            P(f"v_add_u32 {vo1[j]}, {vt[0]}, {vt[1]}")
    P(f"""s_mul_i32 {sP[2]}, {sW}, {32 * 3584}
    s_mul_i32 {sP[1]}, {sIC}, 224
    s_add_u32 {sP[2]}, {sP[2]}, {sP[1]}
    s_mul_i32 {sP[3]}, {sW}, 7168""")

    def it_w1(rnd):
        sl = ((rnd + 1) & 3) * 4

        def mk(j):
            def f():
                assert state.get('wo_dead')
                if j == 0 and rnd:
                    P(f"s_add_u32 {sP[2]}, {sP[2]}, {4 * 32 * 3584}")
                P(f"s_add_u32 m0, {sP[3]}, {L_W1 + sl * 7168 + (j >> 2) * 4096}")
                P.vmem(f"buffer_load_dwordx4 {vo1[j]}, {srd['w1']}, {sP[2]} offen offset:{1024 * (j & 3)} lds", ('w1', rnd), 7)
            return f
        return [mk(j) for j in range(7)]

    w1_items = it_w1(0) + it_w1(1) + it_w1(2) + it_w1(3)

    def take(n):
        return [w1_items.pop(0) for i in range(min(n, len(w1_items)))]

    for j in range(4):
        P(f"v_xor_b32 {vTB[j]}, {32 * j}, {vTR0}\nv_add_u32 {vTB[j]}, {L_WO}, {vTB[j]}")
    V.free(vTR0)
    aWO = lambda s, j: aX.sub(s * 16 + j * 4, 4)
    xres = V(8, name='xres')
    P(f"""v_and_b32 {vt[0]}, 7, {vN}
    v_lshrrev_b32 {vt[1]}, 1, {vG}
    v_xor_b32 {vt[0]}, {vt[0]}, {vt[1]}
    v_lshlrev_b32 {vt[0]}, 4, {vt[0]}
    v_lshl_or_b32 {vt[0]}, {vN}, 7, {vt[0]}
    v_and_b32 {vt[1]}, 1, {vG}
    v_lshl_or_b32 {vt[0]}, {vt[1]}, 3, {vt[0]}
    v_add_u32 {vt[0]}, {sW2K}, {vt[0]}""")
    for j in range(1, 4):
        P(f"v_xor_b32 {vt[j]}, {32 * j}, {vt[0]}")
    P.wait(vm=['wo', 'xres', ('Q', 15)], lg='all')
    P("s_barrier")
    stamp('qb')
    for t in range(3):
        rd_q(t, 0)
        rd_q(t, 1)
    for j in range(4):
        P.dsop(f"ds_read_b64 {xres.sub(2 * j, 2)}, {vt[j]} offset:{L_XR}", 'xres')

    def wo_rd(s):
        return [(lambda j=j, hf=hf: P.dsop(f"ds_read_b64_tr_b16 {aWO(s, j).sub(2 * hf, 2)}, {vTB[j]} offset:{s * 4096 + hf * 2048}", 'wo'))
                for j in range(4) for hf in range(2)]

    pre_items = it_pre()
    stQ = P.pace((pre_items if cfg.get('pre_first', True) else []) + take(0), cfg.get('iv_qg', 300), first=16)
    for t in range(16):
        if t == G1_AT:
            lab = P.label('g1')
            with P.nopace():
                P(f"s_cmp_lg_u32 {sW}, 0\ns_cbranch_scc1 {lab}")
                g1_loads()
                P(f"{lab}:")
        rds = wo_rd(t - 1) if t else []
        if t + 3 < 16:
            rds = [lambda t=t: rd_q(t + 3, 0), lambda t=t: rd_q(t + 3, 1)] + rds
        P.wait(lg=('Q', t))
        for u in range(5):
            if u < 4:
                mf(accQ[u], qf[t & 3], xf(t, u), t == 0)
            else:
                mf(csQ, qf[t & 3], vONE, t == 0)
            with P.nopace():
                for i in range(2):
                    if rds:
                        rds.pop(0)()
    for f in wo_rd(15):
        f()
    P.unpace(stQ)
    V.free(qf, gr, vWA)
    stamp('q1')
    P.wait(lg='all')
    P("s_barrier")
    state['wo_dead'] = True
    lskip, lchk, lgo = P.label('own_skip'), P.label('own_chk'), P.label('own_go')
    P(f"s_cmp_lg_u32 {sW}, 0\ns_cbranch_scc1 {lskip}\ns_mov_b32 {sCNT}, 0")
    if G1_AT >= 16:
        g1_loads()
    P(f"{lchk}:\ns_waitcnt vmcnt(0)")
    P(f"v_xor_b32 {vt[0]}, {gi[0][3]}, {vTAG}")
    for m in range(1, 8):
        P(f"v_xor_b32 {vt[1]}, {gi[m][3]}, {vTAG}\nv_or_b32 {vt[0]}, {vt[0]}, {vt[1]}")
    P(f"v_cmp_ne_u32 vcc, 0, {vt[0]}\ns_cbranch_vccz {lgo}")
    P(f"s_add_u32 {sCNT}, {sCNT}, 1\ns_cmp_gt_u32 {sCNT}, {SPIN}\ns_cbranch_scc1 {lgo}")
    g1_loads()
    P(f"s_branch {lchk}\n{lgo}:")
    ks = V(4, name='ksum')
    for m in range(8):
        mf(ks, vIS, gi[m][0:2], m == 0, M16)
    P(f"v_add_f32 {vt[0]}, {gi[0][2]}, {gi[1][2]}\nv_add_f32 {vt[1]}, {gi[2][2]}, {gi[3][2]}")
    P(f"v_add_f32 {vt[2]}, {gi[4][2]}, {gi[5][2]}\nv_add_f32 {vt[3]}, {gi[6][2]}, {gi[7][2]}")
    P(f"""v_add_f32 {vt[0]}, {vt[0]}, {vt[1]}
    v_add_f32 {vt[2]}, {vt[2]}, {vt[3]}
    v_add_f32 {vt[0]}, {vt[0]}, {vt[2]}
    v_mov_b32 {vt[1]}, {vt[0]}
    v_permlane32_swap_b32 {vt[0]}, {vt[1]}
    v_add_f32 {vt[0]}, {vt[0]}, {vt[1]}
    v_mov_b32 {vt[1]}, {vt[0]}
    v_permlane16_swap_b32 {vt[0]}, {vt[1]}
    v_add_f32 {vt[0]}, {vt[0]}, {vt[1]}
    v_mov_b32_dpp {vt[1]}, {vt[0]} quad_perm:[0,2,0,2] row_mask:0xf bank_mask:0xf
    v_mov_b32_dpp {vt[2]}, {vt[0]} quad_perm:[1,3,1,3] row_mask:0xf bank_mask:0xf
    v_mov_b32 {gi[0][3]}, {vTAG}
    v_cvt_pk_bf16_f32 {gi[0][2]}, {vt[1]}, {vt[2]}
    v_cvt_pk_bf16_f32 {gi[0][0]}, {ks[0]}, {ks[1]}
    v_cvt_pk_bf16_f32 {gi[0][1]}, {ks[2]}, {ks[3]}
    s_lshl_b32 {sT[0]}, {sHQ}, 5
    s_add_u32 {sT[0]}, {sT[0]}, {sRB}
    s_lshl_b32 {sT[0]}, {sT[0]}, 8
    s_add_u32 {sT[0]}, {sT[0]}, {WS_OUTBOX}
    s_mov_b64 exec, 0xffff""")
    P.vmem_maybe(f"buffer_store_dwordx4 {gi[0]}, {vL16}, {srd['ws']}, {sT[0]} offen sc1")
    P(f"s_mov_b64 exec, -1\n{lskip}:")
    stamp('own')
    V.free(ks, gi[1:])
    S.free(sG1)

    g2 = [V(4, name='g2p'), V(4, name='g2m')]
    xr = V(2, name='xrec')
    sG2, sXR = S(1, name='g2'), S(1, name='xr')
    vL8 = V(1, name='l8')
    P(f"""s_lshl_b32 {sG2}, {sHQ}, 2
    s_add_u32 {sG2}, {sG2}, {sW}
    s_lshl_b32 {sG2}, {sG2}, 11
    s_add_u32 {sG2}, {sG2}, {WS_OUTBOX}
    s_lshl_b32 {sXR}, {sRB128}, 7
    s_add_u32 {sXR}, {sXR}, {WS_XCC}
    v_lshlrev_b32 {vL8}, 3, {vN}""")

    def g2_loads(track):
        f = P.vmem if track else (lambda t, tag: P.vmem_maybe(t))
        for sg in range(2):
            f(f"buffer_load_dwordx4 {g2[sg]}, {vL16}, {srd['ws']}, {sG2} offen offset:{1024 * sg} sc1", 'g2')
        f(f"buffer_load_dwordx2 {xr}, {vL8}, {srd['ws']}, {sXR} offen sc1", 'g2')

    qitems = ([] if cfg.get('pre_first', True) else pre_items) + take(cfg.get('w1_qepi', 7))
    stQ = P.pace(qitems, cfg.get('iv_qepi', 170))

    def hook(i):
        if i == cfg.get('g2_hook', 2):
            g2_loads(True)

    phq = [V(4, name=f'phq{u}') for u in range(4)]
    softmax(accQ, csQ, phq, hook)
    P.unpace(stQ)
    hook(2)
    V.free(csQ, st, vPHI, vPT)
    for f in take(cfg.get('w1_g2', 5)):
        f()
    stamp('phq')
    lchk, lgo = P.label('g2_chk'), P.label('g2_go')
    P.wait(vm='g2')
    P(f"s_mov_b32 {sCNT}, 0\n{lchk}:")
    P(f"""v_xor_b32 {vt[0]}, {g2[0][3]}, {vTAG}
    v_xor_b32 {vt[1]}, {g2[1][3]}, {vTAG}
    v_xor_b32 {vt[2]}, {xr[1]}, {vTAG}
    v_or3_b32 {vt[0]}, {vt[0]}, {vt[1]}, {vt[2]}
    v_cmp_ne_u32 vcc, 0, {vt[0]}
    s_cbranch_vccz {lgo}
    s_add_u32 {sCNT}, {sCNT}, 1
    s_cmp_gt_u32 {sCNT}, {SPIN}
    s_cbranch_scc1 {lgo}""")
    g2_loads(False)
    P(f"s_waitcnt vmcnt(0)\ns_branch {lchk}\n{lgo}:")
    stamp('g2')
    zA = V(4, name='zA')
    P(f"""v_cmp_ne_u32 vcc, {sFAST}, {xr[0]}
    v_mov_b32_dpp {zA[0]}, {g2[0][2]} quad_perm:[0,0,0,0] row_mask:0xf bank_mask:0xf
    v_mov_b32_dpp {zA[1]}, {g2[0][2]} quad_perm:[1,1,1,1] row_mask:0xf bank_mask:0xf
    v_mov_b32_dpp {zA[2]}, {g2[1][2]} quad_perm:[0,0,0,0] row_mask:0xf bank_mask:0xf
    v_mov_b32_dpp {zA[3]}, {g2[1][2]} quad_perm:[1,1,1,1] row_mask:0xf bank_mask:0xf
    v_mov_b32 {g2[0][2]}, {g2[1][0]}
    v_mov_b32 {g2[0][3]}, {g2[1][1]}
    s_cmp_eq_u64 vcc, 0
    s_cselect_b32 {sFAST}, {0 if FORCE_SLOW else 1}, 0""")
    num, den = accQ, [V(4) for u in range(4)]
    for u in range(4):
        mf(den[u], zA, phq[u], True)
    for u in range(4):
        mf(num[u], g2[0], phq[u], True)
    P(f"""s_lshl_b32 {sT[4]}, {sRB}, 16
    s_lshl_b32 {sT[0]}, {sHQ}, 11
    s_add_u32 {sT[4]}, {sT[4]}, {sT[0]}
    s_lshr_b32 {sT[0]}, {sW}, 1
    s_lshl_b32 {sT[0]}, {sT[0]}, 10
    s_add_u32 {sT[4]}, {sT[4]}, {sT[0]}
    s_and_b32 {sT[0]}, {sW}, 1
    s_lshl_b32 {sT[0]}, {sT[0]}, 3
    s_add_u32 {sT[4]}, {sT[4]}, {sT[0]}
    s_add_u32 {sT[4]}, {sT[4]}, {WS_O}""")
    for u in range(4):
        P(f"s_xor_b32 {sT[u]}, {sW}, {u}\ns_lshl_b32 {sT[u]}, {sT[u]}, 14\ns_add_u32 {sT[u]}, {sT[u]}, {sT[4]}")
    streams = []
    for u in range(4):
        streams.append([
            f"v_add_f32 {den[u][0]}, {f2u(1e-6)}, {den[u][0]}",
            f"v_rcp_f32 {den[u][0]}, {den[u][0]}",
            f"v_pk_mul_f32 {num[u][0:2]}, {num[u][0:2]}, {den[u][0:2]} {LO}",
            f"v_pk_mul_f32 {num[u][2:4]}, {num[u][2:4]}, {den[u][0:2]} {LO}",
            f"v_cvt_pk_bf16_f32 {den[u][2]}, {num[u][0]}, {num[u][1]}",
            f"v_cvt_pk_bf16_f32 {den[u][3]}, {num[u][2]}, {num[u][3]}"])
    for x in interleave(*streams):
        P(x)

    def stores(lines, plain_ok, tag):
        with P.nopace():
            if not plain_ok:
                for t in lines:
                    P.vmem(t + " sc1", tag)
                return
            l1, l2 = P.label('st_slow'), P.label('st_done')
            P(f"s_cmp_eq_u32 {sFAST}, 0\ns_cbranch_scc1 {l1}")
            for t in lines:
                P.vmem(t, tag)
            tail.append((l1, l2, [t + " sc1" for t in lines]))
            P(f"{l2}:")

    stores([f"buffer_store_dwordx2 {den[u][2:4]}, {vL16}, {srd['ws']}, {sT[u]} offen" for u in range(4)], PLAIN_O, 'ost')
    stamp('ost')
    V.free(zA, g2, xr, phq, vL8, gi[0], vID, vIS)
    S.free(sG2, sXR)
    P(f"v_lshlrev_b32 {vL4}, 2, v0")

    def hop(base, sgrp, sidx, nflag, wait_tags, name, between=None):
        P(f"""s_lshl_b32 {sT[5]}, {sgrp}, 7
        s_add_u32 {sT[5]}, {sT[5]}, {base}
        s_lshl_b32 {sT[4]}, {sidx}, 2
        s_add_u32 {sT[4]}, {sT[4]}, {sT[5]}""")
        P.wait(vm=wait_tags, lg='all')
        P("s_barrier")
        stamp(name + '_dr')
        l0, l1 = P.label('fl_skip'), P.label('fl_slow')
        P(f"s_cmp_lg_u32 {sW}, 0\ns_cbranch_scc1 {l0}\ns_mov_b64 exec, 1\ns_cmp_eq_u32 {sFAST}, 0\ns_cbranch_scc1 {l1}")
        P.vmem_maybe(f"buffer_store_dword {vTAG}, {vL4}, {srd['ws']}, {sT[4]} offen")
        tail.append((l1, l0, [f"buffer_store_dword {vTAG}, {vL4}, {srd['ws']}, {sT[4]} offen sc1"]))
        P(f"{l0}:\ns_mov_b64 exec, -1")
        if between:
            between()
        lp, le = P.label('poll'), P.label('poll_e')
        P(f"s_mov_b64 exec, {(1 << nflag) - 1}\ns_mov_b32 {sCNT}, 0")
        P(f"buffer_load_dword {vPOLL[0]}, {vL4}, {srd['ws']}, {sT[5]} offen sc1\n{lp}:")
        for d in range(2):
            P(f"""buffer_load_dword {vPOLL[1 - d]}, {vL4}, {srd['ws']}, {sT[5]} offen sc1
            s_waitcnt vmcnt(1)
            v_cmp_ne_u32 vcc, {sTAG}, {vPOLL[d]}
            s_cbranch_vccz {le}""")
        P(f"s_add_u32 {sCNT}, {sCNT}, 1\ns_cmp_le_u32 {sCNT}, {SPIN}\ns_cbranch_scc1 {lp}\n{le}:\ns_mov_b64 exec, -1")
        P.vm = []
        stamp(name + '_fl')

    def between2():
        for f in take(cfg.get('w1_h2', 0)):
            f()

    hop(WS_F2, sRB, sHQ, 8, 'ost', 'h2', between2)
    V.free(den)
    if STOP <= 2:
        finish()
        return P, V, S, stamps

    of = [V(4, name=f'of{s}') for s in range(16)]
    P(f"""s_lshl_b32 {sT[4]}, {sRB}, 2
    s_add_u32 {sT[4]}, {sT[4]}, {sW}
    s_lshl_b32 {sT[4]}, {sT[4]}, 14
    s_add_u32 {sT[2]}, {sT[4]}, {WS_O}""")

    def ld_o(s):
        if s and s % 4 == 0:
            P(f"s_add_u32 {sT[2]}, {sT[2]}, 4096")
        P.vmem(f"buffer_load_dwordx4 {of[s]}, {vL16}, {srd['ws']}, {sT[2]} offen offset:{1024 * (s & 3)} sc1", ('o', s))

    LA = cfg.get('b_la', 8)
    accB = accQ
    xf32 = V(16, name='xf32')
    braw = V(2, name='braw')
    for s in range(LA):
        ld_o(s)
        if s < 8:
            P(f"v_lshlrev_b32 {xf32[2 * s]}, 16, {xres[s]}\nv_and_b32 {xf32[2 * s + 1]}, 0xffff0000, {xres[s]}")
    assert LA >= 8

    def ld_b1():
        P(f"""s_add_u32 {sT[0]}, {sW}, 4
        s_min_u32 {sT[0]}, {sT[0]}, 6
        v_mov_b32 {vt[0]}, {sW}
        v_mov_b32 {vt[1]}, {sT[0]}
        v_cmp_gt_u32 vcc, 8, {vN}
        s_mul_i32 {sT[3]}, {sIC}, 224
        v_cndmask_b32 {vt[0]}, {vt[1]}, {vt[0]}, vcc
        v_lshlrev_b32 {vt[0]}, 5, {vt[0]}
        v_lshl_or_b32 {vt[0]}, {vG}, 3, {vt[0]}""")
        P.vmem(f"buffer_load_dwordx2 {braw}, {vt[0]}, {srd['b1']}, {sT[3]} offen", 'b1')

    for s in range(16):
        P.wait(vm=('o', s))
        for j in range(4):
            P(f"{M32} {accB[j]}, {aWO(s, j)}, {of[s]}, {xf32.sub(4 * j, 4) if s == 0 else accB[j]}")
            if j == 0:
                if s + LA < 16:
                    ld_o(s + LA)
                elif s + LA == 16:
                    ld_b1()
                elif w1_items:
                    w1_items.pop(0)()
    stamp('b1')
    for f in take(cfg.get('w1_b', 28)):
        f()
    V.free(of, xf32)
    hb = xres
    s1, s2 = V(4), V(4)
    P(f"""s_lshl_b32 {sT[0]}, {sHQ}, 11
    s_add_u32 {sT[0]}, {sT[0]}, {sT[4]}
    s_add_u32 {sT[0]}, {sT[0]}, {WS_H}
    s_lshr_b32 {sT[1]}, {sT[4]}, 4
    s_lshl_b32 {sT[2]}, {sHQ}, 7
    s_add_u32 {sT[1]}, {sT[1]}, {sT[2]}
    s_add_u32 {sT[1]}, {sT[1]}, {WS_STATS}
    v_lshrrev_b32 {vt[0]}, 1, {vG}
    v_lshlrev_b32 {vt[1]}, 2, {vN}
    v_lshl_or_b32 {vt[0]}, {vt[0]}, 6, {vt[1]}""")
    for j in range(4):
        P(f"v_cvt_pk_bf16_f32 {hb[2 * j]}, {accB[j][0]}, {accB[j][1]}\nv_cvt_pk_bf16_f32 {hb[2 * j + 1]}, {accB[j][2]}, {accB[j][3]}")
    hst = [f"buffer_store_dwordx4 {hb.sub(4 * k, 4)}, {vL16}, {srd['ws']}, {sT[0]} offen offset:{1024 * k}" for k in range(2)]
    stores(hst, PLAIN_H, 'hst')
    P(f"""v_pk_add_f32 {s1[0:2]}, {accB[0][0:2]}, {accB[0][2:4]}
    v_pk_add_f32 {s1[2:4]}, {accB[1][0:2]}, {accB[1][2:4]}
    v_pk_mul_f32 {s2[0:2]}, {accB[0][0:2]}, {accB[0][0:2]}
    v_pk_mul_f32 {s2[2:4]}, {accB[0][2:4]}, {accB[0][2:4]}
    v_pk_add_f32 {s1[0:2]}, {s1[0:2]}, {accB[2][0:2]}
    v_pk_add_f32 {s1[2:4]}, {s1[2:4]}, {accB[2][2:4]}""")
    for j in range(1, 4):
        P(f"v_pk_fma_f32 {s2[0:2]}, {accB[j][0:2]}, {accB[j][0:2]}, {s2[0:2]}\nv_pk_fma_f32 {s2[2:4]}, {accB[j][2:4]}, {accB[j][2:4]}, {s2[2:4]}")
    P(f"""v_pk_add_f32 {s1[0:2]}, {s1[0:2]}, {accB[3][0:2]}
    v_pk_add_f32 {s1[2:4]}, {s1[2:4]}, {accB[3][2:4]}
    v_pk_add_f32 {s2[0:2]}, {s2[0:2]}, {s2[2:4]}
    v_pk_add_f32 {s1[0:2]}, {s1[0:2]}, {s1[2:4]}
    v_add_f32 {s2[0]}, {s2[0]}, {s2[1]}
    v_add_f32 {s1[0]}, {s1[0]}, {s1[1]}
    v_permlane32_swap_b32 {s1[0]}, {s2[0]}
    v_add_f32 {s1[0]}, {s1[0]}, {s2[0]}
    v_mov_b32 {s1[1]}, {s1[0]}
    v_permlane16_swap_b32 {s1[0]}, {s1[1]}
    v_add_f32 {s1[0]}, {s1[0]}, {s1[1]}
    s_mov_b32 exec_lo, 0xffff
    s_mov_b32 exec_hi, 0xffff""")
    stores([f"buffer_store_dword {s1[0]}, {vt[0]}, {srd['ws']}, {sT[1]} offen"], PLAIN_H, 'hst')
    P("s_mov_b64 exec, -1")
    stamp('hst')
    assert not w1_items

    aW2 = lambda e, j: aX.sub(e * 16 + j * 4, 4)
    sW2B, sSTG = S(1, name='w2b'), S(1, name='stg')
    P(f"""s_mul_i32 {sW2B}, {sW}, {448 * 1024}
    s_lshl_b32 {sT[2]}, {sHQ}, 7
    s_add_u32 {sW2B}, {sW2B}, {sT[2]}
    s_mul_i32 {sSTG}, {sW}, 12288""")
    sPR = [S(1, name=f'pr{p}') for p in range(4)]
    for p in range(4):
        P(f"s_add_u32 {sPR[p]}, {sROT if cfg.get('d_rot', True) else 0}, {p}\ns_and_b32 {sPR[p]}, {sPR[p]}, 3")

    def it_w2(e, ldsoff, sbase):
        pp, q = divmod(e, 7)

        def mk(m):
            def f():
                if m == 0:
                    pr, r0 = (2 * pp + q // 3, 32 * (q % 3)) if q < 6 else (2 * pp, 96)
                    P(f"s_mul_i32 {sP[0]}, {sPR[pr]}, {112 * 1024}\ns_add_u32 {sP[0]}, {sP[0]}, {sW2B}")
                    if r0:
                        P(f"s_add_u32 {sP[0]}, {sP[0]}, {r0 * 1024}")
                    P(f"s_add_u32 m0, {sbase}, {ldsoff}")
                if m == 2 and q == 6:
                    P(f"s_mul_i32 {sP[0]}, {sPR[2 * pp + 1]}, {112 * 1024}\ns_add_u32 {sP[0]}, {sP[0]}, {sW2B}\ns_add_u32 {sP[0]}, {sP[0]}, {(96 - 16) * 1024}")
                P.vmem(f"buffer_load_dwordx4 {voB[m]}, {srd['w2']}, {sP[0]} offen offset:{1024 * m} lds", ('w2', e), 4)
            return f
        return [mk(m) for m in range(4)]

    def rd_w2(e, ldsoff):
        return [(lambda j=j, hf=hf: P.dsop(f"ds_read_b64_tr_b16 {aW2(e, j).sub(2 * hf, 2)}, {vTB[j]} offset:{ldsoff + hf * 2048}", ('w2', e)))
                for j in range(4) for hf in range(2)]

    hres = Reg('a', 224, 8)
    EARLY = cfg.get('w2_early', 0)
    v1A = [V(1, name='w1a0'), V(1, name='w1a1')]
    csb = V(8, name='csb')

    def between3():
        P(f"""v_mul_u32_u24 {vt[0]}, 144, {vN}
        v_lshl_add_u32 {vt[0]}, {vG}, 3, {vt[0]}
        v_add_u32 {vt[0]}, {sSTG}, {vt[0]}
        v_mul_u32_u24 {vt[1]}, 144, {vPP}
        v_and_b32 {vt[2]}, 7, v0
        v_lshl_add_u32 {vt[1]}, {vt[2]}, 4, {vt[1]}
        v_add_u32 {vt[1]}, {sSTG}, {vt[1]}""")
        if EARLY:
            for e in range(EARLY):
                for f in it_w2(e, 4096 * e, sSTG):
                    f()
        for j in range(4):
            P.dsop(f"ds_write_b64 {vt[0]}, {hb.sub(2 * j, 2)} offset:{8192 + 32 * j}", 'hr')
        P(f"""v_lshrrev_b32 {vt[2]}, 2, v0
        v_mul_u32_u24 {vt[2]}, 224, {vt[2]}
        v_and_b32 {vt[3]}, 3, v0
        v_lshl_add_u32 {vt[2]}, {vt[3]}, 3, {vt[2]}
        v_add_u32 {v1A[0]}, {L_W1}, {vt[2]}
        v_add_u32 {v1A[1]}, {L_W1 + 57344}, {vt[2]}""")
        ca = [[V(1), V(1)], [V(1), V(1)]]
        P(f"s_lshl_b32 {sT[0]}, {sW}, 5\ns_add_u32 {sT[1]}, {sW}, 4\ns_min_u32 {sT[1]}, {sT[1]}, 6\ns_lshl_b32 {sT[1]}, {sT[1]}, 5")
        for b in range(2):
            for r in range(2):
                P(f"v_add_u32 {ca[b][r]}, {sT[b]}, {v1A[r]}")
        P.wait(lg='hr')
        for m in range(2):
            P.dsop(f"ds_read_b128 {hres.sub(4 * m, 4)}, {vt[1]} offset:{8192 + 1152 * m}", 'hr')
        cr = [V(4) for i in range(6)]
        cs = [V(4), V(4)]

        def rd(f):
            sl, b = f >> 1, f & 1
            for hf in range(2):
                P.dsop(f"ds_read_b64_tr_b16 {cr[f % 6].sub(2 * hf, 2)}, {ca[b][sl >> 3]} offset:{(sl & 7) * 7168 + hf * 3584}", ('cs', f))
        for f in range(5):
            rd(f)
        for f in range(32):
            P.wait(lg=('cs', f))
            mf(cs[f & 1], cr[f % 6], vONE, f < 2)
            if f + 5 < 32:
                rd(f + 5)
        for j in range(4):
            P(f"v_subrev_u32 {vTB[j]}, {L_WO}, {vTB[j]}\nv_add_u32 {vTB[j]}, {sSTG}, {vTB[j]}")
        P.wait(vm='b1')
        bf = cr[0]
        P(f"""v_lshlrev_b32 {bf[0]}, 16, {braw[0]}
        v_and_b32 {bf[1]}, 0xffff0000, {braw[0]}
        v_lshlrev_b32 {bf[2]}, 16, {braw[1]}
        v_and_b32 {bf[3]}, 0xffff0000, {braw[1]}
        v_cmp_gt_u32 vcc, 8, {vN}
        v_mov_b32 {vt[0]}, {sT[0]}
        v_mov_b32 {vt[1]}, {sT[1]}
        v_cndmask_b32 {vt[0]}, {vt[1]}, {vt[0]}, vcc
        v_lshlrev_b32 {vt[0]}, 2, {vt[0]}
        v_lshl_or_b32 {vt[0]}, {vG}, 5, {vt[0]}""")
        for r in range(4):
            P(f"v_cndmask_b32 {cs[0][r]}, {cs[1][r]}, {cs[0][r]}, vcc")
        P(f"""v_lshrrev_b32 {vt[1]}, 1, {vN}
        v_min_u32 {vt[1]}, 6, {vt[1]}
        v_lshlrev_b32 {vt[1]}, 7, {vt[1]}
        v_lshl_or_b32 {vt[1]}, {vG}, 5, {vt[1]}
        s_mov_b32 exec_lo, 0x01010101
        s_mov_b32 exec_hi, 0x01010101""")
        LX = 8192 + 3072
        P.dsop(f"ds_write_b128 {vt[0]}, {cs[0]} offset:{LX}", 'cx')
        P.dsop(f"ds_write_b128 {vt[0]}, {bf} offset:{LX + 16}", 'cx')
        P("s_mov_b64 exec, -1")
        P.wait(lg='all')
        P("s_barrier")
        P.dsop(f"ds_read_b128 {csb[0:4]}, {vt[1]} offset:{LX}", 'cx')
        P.dsop(f"ds_read_b128 {csb[4:8]}, {vt[1]} offset:{LX + 16}", 'cx')
        P.wait(lg='all')
        P("s_barrier")
        V.free(ca, cr, cs)

    hop(WS_F3, sRB128, sIC, 16, ['hst'] + [('w1', r) for r in range(4)], 'h3', between3)
    V.free(s1, s2, accB, hb, vo1, vONE, braw)
    if STOP <= 3:
        finish()
        return P, V, S, stamps

    hf_ = [[V(4, name=f'h{s}{t}') for t in range(2)] for s in range(16)]
    acc = [[V(4, name=f'c{j}{t}') for t in range(2)] for j in range(7)]
    RING = 8
    ring = [V(4, name=f'r{i}') for i in range(RING)]
    assert hf_[0][1].base == hf_[0][0].base + 4
    sraw = Reg('v', hf_[0][0].base, 8)
    P(f"""s_lshl_b32 {sT[4]}, {sRB128}, 2
    s_add_u32 {sT[4]}, {sT[4]}, {sW}
    s_lshl_b32 {sT[2]}, {sT[4]}, 15
    s_add_u32 {sT[2]}, {sT[2]}, {WS_H}
    s_add_u32 {sT[3]}, {sT[2]}, 16384""")

    def it_h(s, t):
        def f():
            if s and s % 4 == 0:
                P(f"s_add_u32 {sT[2 + t]}, {sT[2 + t]}, 4096")
            P.vmem(f"buffer_load_dwordx4 {hf_[s][t]}, {vL16}, {srd['ws']}, {sT[2 + t]} offen offset:{1024 * (s & 3)} sc1", ('h', s), 2)
        return f

    def it_stat(i):
        def f():
            assert state['cstep'] >= 1
            if i == 0:
                P(f"s_lshl_b32 {sP[0]}, {sT[4]}, 11\ns_add_u32 {sP[0]}, {sP[0]}, {WS_STATS}")
            P.vmem(f"buffer_load_dword {sraw[i]}, {vt[0]}, {srd['ws']}, {sP[0]} offen offset:{256 * i} sc1", 'stat', 8)
        return f

    citems = [it_h(s, t) for s in range(16) for t in range(2)] + [it_stat(i) for i in range(8)]
    witems = []
    for e in range(EARLY, 3):
        witems += it_w2(e, 4096 * e, sSTG)
    slot = [0, 1, 2]
    nxt = [3]

    def turn(slots, items):
        with P.nopace():
            while any(P.count.get(('w2', slot[i]), 0) < 4 for i in slots):
                items.pop(0)()
            P.wait(vm=[('w2', slot[i]) for i in slots])
            for i in slots:
                for f in rd_w2(slot[i], 4096 * i):
                    f()

        def refill():
            P.wait(lg=[('w2', slot[i]) for i in slots])
            for i in slots:
                slot[i] = None
                if nxt[0] < 14:
                    slot[i] = nxt[0]
                    items.extend(it_w2(nxt[0], 4096 * i, sSTG))
                    nxt[0] += 1
        return refill
    state['cstep'] = -1

    def rd_w1(f, hf):
        s, j = divmod(f, 7)
        sl = (s + 4) % 16
        va, off = (v1A[0], sl * 7168) if sl < 8 else (v1A[1], (sl - 8) * 7168)
        P.dsop(f"ds_read_b64_tr_b16 {ring[f % RING].sub(2 * hf, 2)}, {va} offset:{off + hf * 3584 + 32 * j}", ('w1f', f))

    for i in range(cfg.get('c_la', 8)):
        citems.pop(0)()
        if i < RING - 1:
            rd_w1(i, 0)
            rd_w1(i, 1)
    P(f"""v_and_b32 {vt[0]}, 1, {vG}
    v_lshrrev_b32 {vt[1]}, 1, {vG}
    v_lshl_or_b32 {vt[0]}, {vt[0]}, 1, {vt[1]}
    v_lshlrev_b32 {vt[1]}, 2, {vN}
    v_lshl_or_b32 {vt[0]}, {vt[0]}, 6, {vt[1]}""")
    W2AT = cfg.get('w2_at', 9)
    CEV, WEV = cfg.get('c_every', 2), cfg.get('w_every', 3)
    last = -1
    refill = None
    state['nomfma'] = cfg.get('c_nomfma')
    for s in range(16):
        state['cstep'] = s
        if refill:
            refill()
            refill = None
        P.wait(vm=('h', s))
        for j in range(7):
            f = 7 * s + j
            if not cfg.get('c_nods') and (f % cfg.get('c_wait', 1) == 0):
                P.wait(lg=('w1f', min(111, f + cfg.get('c_wait', 1) - 1)))
            if cfg.get('c_split'):
                for t in range(2):
                    mf(acc[j][t], ring[f % RING], hf_[s][t], s == 0)
                    if f + RING - 1 < 112 and not cfg.get('c_nods'):
                        rd_w1(f + RING - 1, t)
            else:
                for t in range(2):
                    mf(acc[j][t], ring[f % RING], hf_[s][t], s == 0)
                if f + RING - 1 < 112 and not cfg.get('c_nods'):
                    rd_w1(f + RING - 1, 0)
                    rd_w1(f + RING - 1, 1)
            if citems:
                if f - last >= CEV:
                    citems.pop(0)()
                    last = f
            elif witems and f - last >= WEV:
                witems.pop(0)()
                last = f
        if EARLY and s == W2AT:
            refill = turn(list(range(EARLY)), witems)
    assert not citems
    state['nomfma'] = False
    stamp('c1')
    V.free(ring, v1A)
    P("s_barrier")
    sST2 = S(1, name='st2')
    rest = list(range(nxt[0], nxt[0] + 7))
    nxt[0] += 7
    P(f"s_mul_i32 {sST2}, {sW}, {len(rest) * 4096}\ns_add_u32 {sST2}, {sST2}, {L_W1}")
    assert L_W1 + 4 * len(rest) * 4096 <= LDS_BYTES
    gitems = witems
    for i, e in enumerate(rest):
        gitems += it_w2(e, 4096 * i, sST2)
    stG = P.pace(gitems, cfg.get('iv_gelu', 88), first=4)
    P.wait(vm='stat')
    stc = [V(2, name='stc0'), V(2, name='stc1')]
    streams = []
    for t in range(2):
        a = sraw.sub(4 * t, 4)
        streams.append([
            f"v_pk_add_f32 {a[0:2]}, {a[0:2]}, {a[2:4]}",
            f"v_add_f32 {a[0]}, {a[0]}, {a[1]}",
            f"v_mov_b32 {a[1]}, {a[0]}",
            f"v_permlane16_swap_b32 {a[0]}, {a[1]}",
            f"v_add_f32 {a[0]}, {a[0]}, {a[1]}",
            f"v_mul_f32 {a[0]}, {f2u(1 / 512)}, {a[0]}",
            f"v_mov_b32 {a[1]}, {a[0]}",
            f"v_permlane32_swap_b32 {a[0]}, {a[1]}",
            f"v_fma_f32 {a[1]}, -{a[0]}, {a[0]}, {a[1]}",
            f"v_max_f32 {a[1]}, 0, {a[1]}",
            f"v_add_f32 {a[1]}, {f2u(1e-5)}, {a[1]}",
            f"v_rsq_f32 {stc[t][0]}, {a[1]}",
            f"v_mul_f32 {stc[t][1]}, -{a[0]}, {stc[t][0]}"])
    for x in interleave(*streams):
        P(x)
    c1 = -2.0 * math.log2(math.e) * math.sqrt(2.0 / math.pi)
    P(f"s_mov_b32 {sK[0]}, {f2u(c1 * 0.044715)}\ns_mov_b32 {sK[1]}, {f2u(c1)}")
    P(f"""s_lshl_b32 {sT[2]}, {sRB128}, 4
    s_add_u32 {sT[2]}, {sT[2]}, {sIC}
    s_lshl_b32 {sT[2]}, {sT[2]}, 2
    s_add_u32 {sT[2]}, {sT[2]}, {sW}
    s_mul_i32 {sT[2]}, {sT[2]}, 7168
    s_add_u32 {sT[2]}, {sT[2]}, {WS_H1}
    s_add_u32 {sT[3]}, {sT[2]}, 4096""")
    ex = [[hf_[2 + 2 * b][0], hf_[2 + 2 * b][1]] for b in range(2)]
    tm = [[hf_[6 + t][0], hf_[6 + t][1]] for t in range(2)]
    ob = [[hf_[8 + 2 * p][t] for t in range(2)] for p in range(4)]
    W2G = cfg.get('w2_gelu', 2)
    STL = cfg.get('h1_late', False)
    h1st = []
    for j in range(7):
        ce, be = ex[j & 1]
        for r in range(4):
            P(f"v_mov_b32_dpp {ce[r]}, {csb[r]} row_newbcast:{2 * j} row_mask:0xf bank_mask:0xf")
            P(f"v_mov_b32_dpp {be[r]}, {csb[4 + r]} row_newbcast:{2 * j} row_mask:0xf bank_mask:0xf")
        streams = []
        for t in range(2):
            for h in range(2):
                x = acc[j][t].sub(2 * h, 2)
                u_, e_ = tm[t][0].sub(2 * h, 2), tm[t][1].sub(2 * h, 2)
                if j < 6:
                    dst = ob[j >> 1][t][2 * (j & 1) + h]
                else:
                    dst = ob[3][0][2 * t + h]
                streams.append([
                    f"v_pk_fma_f32 {u_}, {ce.sub(2 * h, 2)}, {stc[t]}, {be.sub(2 * h, 2)} op_sel:[0,1,0] op_sel_hi:[1,1,1]",
                    f"v_pk_fma_f32 {x}, {x}, {stc[t]}, {u_} op_sel:[0,0,0] op_sel_hi:[1,0,1]",
                    f"v_pk_mul_f32 {u_}, {x}, {x}",
                    f"v_pk_fma_f32 {u_}, {u_}, {sK}, {sK} op_sel:[0,0,1] op_sel_hi:[1,0,1]",
                    f"v_pk_mul_f32 {e_}, {x}, {u_}",
                    f"v_exp_f32 {e_[0]}, {e_[0]}",
                    f"v_exp_f32 {e_[1]}, {e_[1]}",
                    f"v_pk_add_f32 {e_}, {e_}, 1.0 op_sel_hi:[1,0]",
                    f"v_rcp_f32 {e_[0]}, {e_[0]}",
                    f"v_rcp_f32 {e_[1]}, {e_[1]}",
                    f"v_pk_mul_f32 {x}, {x}, {e_}",
                    f"v_cvt_pk_bf16_f32 {dst}, {x[0]}, {x[1]}"])
        for x in interleave(*streams):
            P(x)
        if refill:
            refill()
            refill = None
        if j == W2G:
            refill = turn([0, 1, 2], gitems)
        if j & 1:
            for t in range(2):
                b = 2 * (j >> 1) + t
                h1st.append(f"buffer_store_dwordx4 {ob[j >> 1][t]}, {vL16}, {srd['ws']}, {sT[2 + (b >> 2)]} offen offset:{1024 * (b & 3)} sc1")
        if j == 6:
            h1st.append(f"buffer_store_dwordx4 {ob[3][0]}, {vL16}, {srd['ws']}, {sT[3]} offen offset:2048 sc1")
        if not STL or j == 6:
            with P.nopace():
                for x in h1st:
                    P.vmem(x, 'h1st')
            h1st = []
    P.unpace(stG, flush=False)
    stamp('gelu')
    V.free(acc, csb, stc)

    rb = V(16, name='rb')
    b2raw = V(4, name='b2raw')

    def between4():
        for f in gitems:
            f()
        P(f"v_and_b32 {vt[0]}, 7, v0\nv_lshlrev_b32 {vt[0]}, 4, {vt[0]}\ns_lshl_b32 {sT[0]}, {sHQ}, 7")
        P.vmem(f"buffer_load_dwordx4 {b2raw}, {vt[0]}, {srd['b2']}, {sT[0]} offen", 'b2')
        tb2 = [V(1) for j in range(4)]
        for j in range(4):
            P(f"v_subrev_u32 {tb2[j]}, {sSTG}, {vTB[j]}\nv_add_u32 {tb2[j]}, {sST2}, {tb2[j]}")
        for i, e in enumerate(rest):
            P.wait(vm=('w2', e))
            for j in range(4):
                for hf in range(2):
                    P.dsop(f"ds_read_b64_tr_b16 {aW2(e, j).sub(2 * hf, 2)}, {tb2[j]} offset:{4096 * i + hf * 2048}", ('w2', e))
            if i == 1 and nxt[0] < 14:
                P.wait(lg=('w2', rest[0]))
                for f in it_w2(13, 0, sST2):
                    f()
        for i, e in enumerate(slot):
            if e is not None:
                P.wait(vm=('w2', e))
                for f in rd_w2(e, 4096 * i):
                    f()
        P.wait(vm='b2')
        for m in range(2):
            for k in range(4):
                P(f"""v_accvgpr_read_b32 {vt[4]}, {hres[4 * m + k]}
                v_lshlrev_b32 {vt[2]}, 16, {b2raw[k]}
                v_and_b32 {vt[3]}, 0xffff0000, {b2raw[k]}
                v_lshlrev_b32 {vt[0]}, 16, {vt[4]}
                v_and_b32 {vt[1]}, 0xffff0000, {vt[4]}
                v_add_f32 {rb[8 * m + 2 * k]}, {vt[0]}, {vt[2]}
                v_add_f32 {rb[8 * m + 2 * k + 1]}, {vt[1]}, {vt[3]}""")
        if nxt[0] < 14:
            assert nxt[0] == 13
            P.wait(vm=('w2', 13))
            for j in range(4):
                for hf in range(2):
                    P.dsop(f"ds_read_b64_tr_b16 {aW2(13, j).sub(2 * hf, 2)}, {tb2[j]} offset:{hf * 2048}", ('w2', 13))
        V.free(tb2)

    hop(WS_F4, sRB128, sIC, 16, 'h1st', 'h4', between4)
    V.free(hf_, b2raw, voB, vTB)
    if STOP <= 4:
        finish()
        return P, V, S, stamps

    DR = cfg.get('d_ring', 4)
    DLA = cfg.get('d_la', 10)
    hq_ = [[V(4, name=f'd{e}{t}') for t in range(4)] for e in range(DR)]
    accD = [[V(4, name=f'D{t}{j}') for j in range(4)] for t in range(4)]
    sD = S(1, name='dbase')
    P(f"""s_lshl_b32 {sD}, {sRB128}, 4
    s_lshl_b32 {sT[0]}, {sW}, 2
    s_add_u32 {sD}, {sD}, {sT[0]}
    s_lshl_b32 {sD}, {sD}, 2
    s_and_b32 {sT[0]}, {sRB}, 1
    s_lshl_b32 {sT[0]}, {sT[0]}, 1
    s_add_u32 {sD}, {sD}, {sT[0]}
    s_mul_i32 {sD}, {sD}, 7168
    s_add_u32 {sD}, {sD}, {WS_H1}""")
    for p in range(4):
        P(f"s_mul_i32 {sPR[p]}, {sPR[p]}, 28672\ns_add_u32 {sPR[p]}, {sPR[p]}, {sD}")

    def ld_d(i):
        e, t = i >> 2, i & 3
        pp, q = divmod(e, 7)
        tp_, tt = t >> 1, t & 1
        if q < 6:
            if tt == 0:
                P(f"s_add_u32 {sT[0]}, {sPR[2 * pp + q // 3]}, {tp_ * 7168 + (q % 3) * 2048}")
            P.vmem(f"buffer_load_dwordx4 {hq_[e % DR][t]}, {vL16}, {srd['ws']}, {sT[0]} offen offset:{1024 * tt} sc1", ('d', i))
        else:
            P(f"s_add_u32 {sT[0]}, {sPR[2 * pp + tt]}, {tp_ * 7168 + 6144}")
            P.vmem(f"buffer_load_dwordx4 {hq_[e % DR][t]}, {vL16}, {srd['ws']}, {sT[0]} offen sc1", ('d', i))

    assert DLA <= 4 * DR - 2
    for i in range(DLA):
        ld_d(i)
    P.wait(lg='all')
    state['nomfma'] = cfg.get('d_nomfma')
    for e in range(14):
        fr = hq_[e % DR]
        for t in range(4):
            i = 4 * e + t
            if e % 7 == 6:
                if t % 2 == 0:
                    P.wait(vm=('d', i + 1))
                    P(f"v_swap_b32 {fr[t][2]}, {fr[t + 1][0]}\nv_swap_b32 {fr[t][3]}, {fr[t + 1][1]}")
            else:
                P.wait(vm=('d', i))
            for j in range(4):
                mf(accD[t][j], aW2(e, j), fr[t], e == 0)
                if j == 0 and i + DLA < 56:
                    ld_d(i + DLA)
    stamp('d1')
    P(f"""s_barrier
    v_mul_u32_u24 {vt[0]}, 272, {vN}
    v_lshl_add_u32 {vt[0]}, {vG}, 4, {vt[0]}
    s_mul_i32 {sT[0]}, {sW}, 4352
    v_add_u32 {vt[0]}, {sT[0]}, {vt[0]}
    v_mul_u32_u24 {vt[1]}, 272, {vPP}
    v_and_b32 {vt[2]}, 7, v0
    v_lshl_add_u32 {vt[1]}, {vt[2]}, 5, {vt[1]}
    s_mul_i32 {sT[0]}, {sW}, {4 * 4352}
    v_add_u32 {vt[1]}, {sT[0]}, {vt[1]}
    v_lshlrev_b32 {vt[2]}, 4, {vt[2]}
    v_lshl_or_b32 {vt[2]}, {vPP}, 10, {vt[2]}""")
    for t in range(4):
        for j in range(4):
            P.dsop(f"ds_write_b128 {vt[0]}, {accD[t][j]} offset:{t * 4 * 4352 + 64 * j}", 'red')
    P(f"""s_lshl_b32 {sT[0]}, {sHQ}, 7
    s_add_u32 {sT[0]}, {sT[0]}, {sXB}
    s_add_u32 {sT[1]}, {sT[0]}, 8192""")
    P.wait(lg='all')
    P("s_barrier")
    rq = [x for e in range(4) for x in hq_[e]]
    for m in range(2):
        for k in range(4):
            for h in range(2):
                P.dsop(f"ds_read_b128 {rq[8 * m + 2 * k + h]}, {vt[1]} offset:{k * 4352 + m * 2176 + 16 * h}", ('red', m, k))
    for m in range(2):
        for k in range(4):
            P.wait(lg=('red', m, k))
            for h in range(2):
                src = rq[8 * m + 2 * k + h]
                for i in range(2):
                    d = rb.sub(8 * m + 4 * h + 2 * i, 2)
                    P(f"v_pk_add_f32 {d}, {d}, {src.sub(2 * i, 2)}")
        o = accD[0][m]
        for k in range(4):
            P(f"v_cvt_pk_bf16_f32 {o[k]}, {rb[8 * m + 2 * k]}, {rb[8 * m + 2 * k + 1]}")
        P.vmem(f"buffer_store_dwordx4 {o}, {vt[2]}, {srd['out']}, {sT[m]} offen {OUT_SC}", 'out')
    lab = P.label('ep')
    P(f"s_or_b32 {sT[2]}, s2, {sW}\ns_cmp_lg_u32 {sT[2]}, 0\ns_cbranch_scc1 {lab}\ns_mov_b64 exec, 1")
    P.vmem_maybe(f"buffer_store_dword {vTAG}, {vL4}, {srd['ws']}, 0 offen offset:{WS_EPOCH} sc1")
    P(f"s_mov_b64 exec, -1\n{lab}:")
    finish()
    return P, V, S, stamps


HEADER = """; Fused block: preLN + hedgehog linear attention + preLN + GELU MLP, one persistent launch.
; Kernarg layout (96 bytes, pointers): x, wqkv, w_phi, wo, (B_x), w1, b1, w2, b2, out, debug, ws
; @launch grid=(256,1,1) block=(256,1,1) lds={lds}
.amdgcn_target "amdgcn-amd-amdhsa--gfx950"
.text
.globl {name}
.p2align 8
.type {name},@function
{name}:
"""
FOOTER = """.section .rodata,"a"
.p2align 6
.amdhsa_kernel {name}
  .amdhsa_next_free_vgpr 512
  .amdhsa_next_free_sgpr 102
  .amdhsa_accum_offset 256
  .amdhsa_group_segment_fixed_size 0
  .amdhsa_kernarg_size 96
  .amdhsa_user_sgpr_count 2
  .amdhsa_user_sgpr_kernarg_segment_ptr 1
  .amdhsa_system_sgpr_workgroup_id_x 1
.end_amdhsa_kernel
"""


def build(cfg, path):
    P, V, S, stamps = gen(cfg)
    nops = P.pad()
    txt = HEADER.format(name=NAME, lds=LDS_BYTES) + P.text() + FOOTER.format(name=NAME)
    open(path, 'w').write(txt)
    n = sum(1 for x in P.ins if x.real)
    print(f"{path}: {n} instr, {nops} pad states, vgpr high {V.high}, sgpr high {S.high}, stamps {[s[0] for s in stamps]}", file=sys.stderr)
    return [s[0] for s in stamps]


if __name__ == '__main__':
    import json
    cfg = json.loads(sys.argv[2]) if len(sys.argv) > 2 else {}
    build(cfg, sys.argv[1])
```
